```python
import torch

def _softmax(x, axis=-1):
    return torch.softmax(x, dim=axis)
def _gelu(x):
    return torch.nn.functional.gelu(x, approximate="tanh")
def _silu(x):
    return torch.nn.functional.silu(x)
def _sigmoid(x):
    return torch.sigmoid(x)
def _layernorm(x, axis=-1, eps=1e-5):
    m = x.mean(dim=axis, keepdim=True)
    v = x.var(dim=axis, keepdim=True, unbiased=False)
    return (x - m) / torch.sqrt(v + eps)
def _scatter_add(tgt, idx, src, axis=0):
    return tgt.clone().index_add_(axis, idx, src)
def _segment_sum(src, seg, n):
    out = torch.zeros((n,) + src.shape[1:], dtype=src.dtype)
    return out.index_add_(0, seg, src)
def _pad(x, pw):
    flat = tuple(v for pair in reversed(pw) for v in pair)
    return torch.nn.functional.pad(x, flat)

kernel_name = 'concat_heads__mha_block_cached__gqa_block_cached__near_ridge'

def setup_inputs():

    _w = (lambda a: (lambda t: t.to(torch.bfloat16) if t.is_floating_point() else t)(torch.as_tensor(a)))
    def _A_setup():
        B, Sq, D = 8, 144, 448
        H, Sk, Dh = 16, 512, 256
        return {
            "x": _w((lambda *s: torch.randn(*s, dtype=torch.bfloat16) * 0.8)(B, Sq, D)),
            "k_cache": _w((lambda *s: torch.randn(*s, dtype=torch.bfloat16) * 0.8)(B, H, Sk, Dh)),
            "v_cache": _w((lambda *s: torch.randn(*s, dtype=torch.bfloat16) * 0.05)(B, H, Sk, Dh)),
            "wq": _w((lambda *s: torch.randn(*s, dtype=torch.bfloat16) * 0.8)(D, H * Dh) * (D ** -0.5)),
            "wo": _w((lambda *s: torch.randn(*s, dtype=torch.bfloat16) * 0.05)(H * Dh, D) * ((H * Dh) ** -0.5)),
        }
    _A_in = _A_setup()

    def _B_setup():
        B, Sq, D = 8, 144, 448
        Hq, Hkv, Sk, Dh = 16, 16, 512, 256
        assert Hq % Hkv == 0, (Hq, Hkv)
        return {
            "x": _w((lambda *s: torch.randn(*s, dtype=torch.bfloat16) * 0.8)(B, Sq, D)),
            "k_cache": _w((lambda *s: torch.randn(*s, dtype=torch.bfloat16) * 0.8)(B, Hkv, Sk, Dh)),
            "v_cache": _w((lambda *s: torch.randn(*s, dtype=torch.bfloat16) * 0.05)(B, Hkv, Sk, Dh)),
            "wq": _w((lambda *s: torch.randn(*s, dtype=torch.bfloat16) * 0.8)(D, Hq * Dh) * (D ** -0.5)),
            "wo": _w((lambda *s: torch.randn(*s, dtype=torch.bfloat16) * 0.05)(Hq * Dh, D) * ((Hq * Dh) ** -0.5)),
        }
    _B_in = _B_setup()

    return {
        "A_x": _A_in["x"],
        "A_k_cache": _A_in["k_cache"],
        "A_v_cache": _A_in["v_cache"],
        "A_wq": _A_in["wq"],
        "A_wo": _A_in["wo"],
        "B_x": _B_in["x"],
        "B_k_cache": _B_in["k_cache"],
        "B_v_cache": _B_in["v_cache"],
        "B_wq": _B_in["wq"],
        "B_wo": _B_in["wo"],
    }

def reference(A_x, A_k_cache, A_v_cache, A_wq, A_wo, B_x, B_k_cache, B_v_cache, B_wq, B_wo):
    def _A_ref(x, k_cache, v_cache, wq, wo):
        B, Sq, D = x.shape
        H, Dh = 16, 256
        q = (lambda x, *d: x.permute(*d))((x @ wq).reshape(B, Sq, H, Dh), 0, 2, 1, 3)
        scores = torch.einsum("bhqd,bhkd->bhqk", q, k_cache) * (Dh ** -0.5)
        p = _softmax(scores, axis=-1)
        o = torch.einsum("bhqk,bhkd->bhqd", p, v_cache)
        return (lambda x, *d: x.permute(*d))(o, 0, 2, 1, 3).reshape(B, Sq, H * Dh) @ wo

    def _B_ref(x, k_cache, v_cache, wq, wo):
        B, Sq, D = x.shape
        Hq, Dh = 16, 256
        Hkv = k_cache.shape[1]
        rep = Hq // Hkv
        q = (lambda x, *d: x.permute(*d))((x @ wq).reshape(B, Sq, Hq, Dh), 0, 2, 1, 3)
        k = (lambda x, n, axis: torch.repeat_interleave(x, n, dim=axis))(k_cache, rep, axis=1)
        v = (lambda x, n, axis: torch.repeat_interleave(x, n, dim=axis))(v_cache, rep, axis=1)
        scores = torch.einsum("bhqd,bhkd->bhqk", q, k) * (Dh ** -0.5)
        p = _softmax(scores, axis=-1)
        o = torch.einsum("bhqk,bhkd->bhqd", p, v)
        return (lambda x, *d: x.permute(*d))(o, 0, 2, 1, 3).reshape(B, Sq, Hq * Dh) @ wo

    a = _A_ref(A_x, A_k_cache, A_v_cache, A_wq, A_wo)
    b = _B_ref(B_x, B_k_cache, B_v_cache, B_wq, B_wo)
    return torch.concatenate([a, b], axis=-1)
```

```python
import sys, os
STAMP = os.environ.get("STAMP"); NOLOAD = os.environ.get("NOLOAD"); OUT = os.environ.get("OUT")
NAME = "concat_heads__mha_block_cached__gqa_block_cached__near_ridge"
L = []
def e(s=""): L.append("    " + s if s and not s.endswith(":") else s)
D = 8
NSLOT = 62
LDS1 = D * 16384
HDR = open("cdna_kernels/%s.s.ref" % NAME).read().split("; Override launch")[0]
FB = 192
NFB = 16
PF = 6

def stamp(i):
    if not STAMP: return
    e("s_memtime s[60:61]"); e("s_waitcnt lgkmcnt(0)"); e("v_mov_b32 v14, s60"); e("v_mov_b32 v15, %d" % (i*4))
    e("s_lshl_b32 s62, s9, 6"); e("v_add_u32 v15, s62, v15")
    e("buffer_store_dword v14, v15, s[56:59], 0 offen")

def kernel1():
    e(".globl attn_kernel"); e(".p2align 8"); e(".type attn_kernel,@function")
    e("attn_kernel:")
    e("s_cmp_ge_u32 s2, 256"); e("s_cbranch_scc1 L1_end")
    e("s_and_b32 s3, s2, 7"); e("s_lshr_b32 s4, s2, 3")
    e("s_lshr_b32 s5, s3, 2")
    e("s_and_b32 s6, s3, 3"); e("s_lshl_b32 s6, s6, 2"); e("s_and_b32 s7, s4, 3"); e("s_add_u32 s6, s6, s7")
    e("s_lshr_b32 s7, s4, 2")
    e("s_mul_i32 s8, s5, 40")
    e("s_add_u32 s10, s0, s8"); e("s_addc_u32 s11, s1, 0")
    e("s_load_dwordx8 s[12:19], s[10:11], 0")
    e("s_load_dwordx2 s[52:53], s[10:11], 32")
    e("s_load_dwordx2 s[20:21], s[0:1], 96")
    if STAMP:
        e("s_load_dwordx2 s[56:57], s[0:1], 88"); e("s_mov_b32 s59, 0x20000"); e("s_cmp_eq_u32 s2, 0"); e("s_cselect_b32 s58, 256, 0")
    e("v_lshrrev_b32 v1, 6, v0"); e("s_nop 0"); e("v_readfirstlane_b32 s9, v1")
    e("v_and_b32 v0, 63, v0")
    e("s_waitcnt lgkmcnt(0)")
    e("s_mul_i32 s22, s7, 129024")
    e("s_add_u32 s24, s12, s22"); e("s_addc_u32 s25, s13, 0"); e("s_mov_b32 s26, 129024"); e("s_mov_b32 s27, 0x20000")
    e("s_lshl_b32 s23, s7, 4"); e("s_add_u32 s23, s23, s6"); e("s_lshl_b32 s22, s23, 18")
    e("s_add_u32 s28, s14, s22"); e("s_addc_u32 s29, s15, 0"); e("s_mov_b32 s30, 262144"); e("s_mov_b32 s31, 0x20000")
    e("s_add_u32 s32, s16, s22"); e("s_addc_u32 s33, s17, 0"); e("s_mov_b32 s34, 262144"); e("s_mov_b32 s35, 0x20000")
    e("s_lshl_b32 s22, s6, 9")
    e("s_add_u32 s36, s18, s22"); e("s_addc_u32 s37, s19, 0"); e("s_sub_u32 s38, 3670016, s22"); e("s_mov_b32 s39, 0x20000")
    e("s_lshl_b32 s22, s5, 7"); e("s_add_u32 s22, s22, s23"); e("s_mul_i32 s22, s22, 129024")
    e("s_add_u32 s40, s20, s22"); e("s_addc_u32 s41, s21, 0"); e("s_mov_b32 s42, 129024"); e("s_mov_b32 s43, 0x20000")
    e("s_mul_i32 s22, s6, 229376")
    e("s_add_u32 s64, s52, s22"); e("s_addc_u32 s65, s53, 0"); e("s_mov_b32 s66, 229376"); e("s_mov_b32 s67, 0x20000")
    e("s_cmp_eq_u32 s9, 3"); e("s_cbranch_scc1 L1_loader")

    e("v_and_b32 v1, 15, v0"); e("v_lshrrev_b32 v2, 4, v0"); e("v_lshrrev_b32 v3, 2, v1"); e("v_and_b32 v16, 3, v0")
    e("s_mul_i32 s44, s9, 48")
    e("v_add_u32 v17, s44, v1"); e("v_mul_u32_u24 v17, 896, v17"); e("v_lshl_add_u32 v18, v2, 4, v17")
    e("v_add_u32 v19, 14336, v18"); e("v_add_u32 v20, 14336, v19")
    for t in range(3):
        for ks in range(14):
            r = (t * 14 + ks) * 4
            e("buffer_load_dwordx4 a[%d:%d], v%d, s[24:27], 0 offen offset:%d" % (r, r + 3, 18 + t, ks * 64))
    e("v_lshl_add_u32 v21, v2, 3, v3"); e("v_lshlrev_b32 v21, 9, v21"); e("v_lshl_add_u32 v21, v16, 4, v21")
    for i in range(4):
        e("v_xor_b32 v22, %d, v3" % i); e("v_lshl_add_u32 v%d, v22, 6, v21" % (4 + i))
    e("v_lshl_add_u32 v21, v3, 3, v16"); e("v_lshlrev_b32 v21, 9, v21")
    e("v_xor_b32 v22, v2, v16"); e("v_lshl_add_u32 v21, v22, 4, v21")
    for i in range(4):
        e("v_xor_b32 v22, %d, v3" % i); e("v_lshl_add_u32 v%d, v22, 6, v21" % (8 + i))
    e("v_and_b32 v21, 1, v2"); e("v_lshl_add_u32 v21, v21, 3, v3"); e("v_mul_u32_u24 v21, 896, v21")
    e("v_lshrrev_b32 v22, 1, v2"); e("v_lshl_add_u32 v21, v22, 14, v21"); e("v_lshl_add_u32 v21, v16, 4, v21")
    e("v_lshrrev_b32 v22, 1, v3"); e("v_lshl_add_u32 v12, v22, 6, v21"); e("v_xor_b32 v22, 1, v22"); e("v_lshl_add_u32 v13, v22, 6, v21")

    CUR = 60
    def kind(s): return "wq" if s < 14 else "k" if s < 30 else "v" if s < 46 else "wo"
    frags = []
    for s in range(NSLOT):
        k = kind(s)
        if k == "wo":
            if s % 2 == 1: continue
            for f in range(28): frags.append((s, f))
        else:
            for f in range(16): frags.append((s, f))
    lds_q = []
    state = {"issued": 0}
    def issue_read(idx):
        s, f = frags[idx]; k = kind(s); fb = FB + (idx % NFB) * 4
        if f == 0:
            e("s_barrier")
            if k == "wo":
                e("s_waitcnt lgkmcnt(0)"); lds_q.clear(); e("s_barrier")
            base = (s % D) * 16384
            src = {"wq": 4, "v": 4, "k": 8, "wo": 12}[k]
            for i in range(2 if k == "wo" else 4):
                e("v_add_u32 v%d, %d, v%d" % ((8 if k == "wo" else CUR) + i, base, src + i))
        if k == "k":
            tile, ks = f >> 3, f & 7
            e("ds_read_b128 a[%d:%d], v%d offset:%d" % (fb, fb + 3, CUR + (ks & 3), (ks >> 2) * 256 + tile * 2048)); n = 1
        elif k == "wo":
            kk, tile = f >> 1, f & 1
            off = (kk >> 1) * 128 + tile * 8
            e("ds_read_b64_tr_b16 a[%d:%d], v%d offset:%d" % (fb, fb + 1, 8 + (kk & 1), off))
            e("ds_read_b64_tr_b16 a[%d:%d], v%d offset:%d" % (fb + 2, fb + 3, 8 + (kk & 1), off + 3584)); n = 2
        else:
            kk, tile = f >> 1, f & 1
            off = (kk >> 2) * 256 + tile * 8
            e("ds_read_b64_tr_b16 a[%d:%d], v%d offset:%d" % (fb, fb + 1, CUR + (kk & 3), off))
            e("ds_read_b64_tr_b16 a[%d:%d], v%d offset:%d" % (fb + 2, fb + 3, CUR + (kk & 3), off + 2048)); n = 2
        lds_q.append((idx, n)); state["issued"] = idx + 1
    def wait_frag(idx):
        while lds_q and lds_q[0][0] <= idx: lds_q.pop(0)
        e("s_waitcnt lgkmcnt(%d)" % sum(n for _, n in lds_q))
    def drain():
        lds_q.clear()
    def oacc(f, t):
        x = (f * 3 + t) * 4
        return "a[%d:%d]" % (x, x + 3) if x < 192 else "v[%d:%d]" % (112 + x - 192, 112 + x - 192 + 3)
    def mfmas(idx):
        s, f = frags[idx]; k = kind(s); fb = FB + (idx % NFB) * 4
        out = []
        for t in range(3):
            if k == "wq":
                a = 64 + (f * 3 + t) * 4; d = "v[%d:%d]" % (a, a + 3); b = (t * 14 + s) * 4; bs = "a[%d:%d]" % (b, b + 3); first = s == 0
            elif k == "k":
                j = s - 14; tile, ks = f >> 3, f & 7
                a = 16 + (tile * 3 + t) * 4; d = "v[%d:%d]" % (a, a + 3); q = (t * 8 + ks) * 4; bs = "a[%d:%d]" % (q, q + 3); first = ks == 0
            elif k == "v":
                j = s - 30; a = (f * 3 + t) * 4; d = "a[%d:%d]" % (a, a + 3); p = 64 + (j * 3 + t) * 4; bs = "v[%d:%d]" % (p, p + 3); first = j == 0
            else:
                ks = (s - 46) // 2; d = oacc(f, t); o = 16 + (t * 8 + ks) * 4; bs = "v[%d:%d]" % (o, o + 3); first = ks == 0
            out.append("v_mfma_f32_16x16x32_bf16 %s, a[%d:%d], %s, %s" % (d, fb, fb + 3, bs, "0" if first else d))
        return out
    def spost(hh):
        j, tile = hh >> 1, hh & 1
        r = []
        for t in range(3):
            d0 = 16 + (tile * 3 + t) * 4; p = 64 + (j * 3 + t) * 4 + 2 * tile; m = 52 + t
            r += ["v_max3_f32 v%d, v%d, v%d, v%d" % (m, m, d0, d0 + 1), "v_cvt_pk_bf16_f32 v%d, v%d, v%d" % (p, d0, d0 + 1),
                  "v_max3_f32 v%d, v%d, v%d, v%d" % (m, m, d0 + 2, d0 + 3), "v_cvt_pk_bf16_f32 v%d, v%d, v%d" % (p + 1, d0 + 2, d0 + 3)]
        return r
    def soft(j):
        r = []
        for t in range(3):
            p = 64 + (j * 3 + t) * 4; m = 52 + t; sm = 55 + t
            for i in range(0, 4, 2):
                for u in range(2):
                    x = 16 + 2 * u
                    r += ["v_lshlrev_b32 v%d, 16, v%d" % (x, p + i + u), "v_and_b32 v%d, 0xffff0000, v%d" % (x + 1, p + i + u)]
                for x in range(16, 20): r.append("v_fma_f32 v%d, v%d, s46, -v%d" % (x, x, m))
                for x in range(16, 20): r.append("v_exp_f32 v%d, v%d" % (x, x))
                r += ["v_add_f32 v%d, v%d, v16" % (sm, sm), "v_cvt_pk_bf16_f32 v%d, v16, v17" % (p + i),
                      "v_add_f32 v%d, v%d, v17" % (sm, sm), "v_cvt_pk_bf16_f32 v%d, v18, v19" % (p + i + 1),
                      "v_add_f32 v%d, v%d, v18" % (sm, sm), "v_add_f32 v%d, v%d, v19" % (sm, sm)]
        return r
    def run(idx0, idx1, fill=None, skip=2):
        fill = list(fill or [])
        nm = (idx1 - idx0 - skip) * 3
        per = -(-len(fill) // nm) if fill else 0
        for idx in range(idx0, idx1):
            while state["issued"] < min(len(frags), idx + PF): issue_read(state["issued"])
            wait_frag(idx)
            for m in mfmas(idx):
                e(m)
                if idx - idx0 >= skip:
                    for _ in range(per):
                        if fill: e(fill.pop(0))
        for x in fill: e(x)
    def first_idx(s): return next(i for i, (a, b) in enumerate(frags) if a == s)
    e("v_xor_b32 v58, 16, v0"); e("v_lshlrev_b32 v58, 2, v58"); e("v_xor_b32 v59, 32, v0"); e("v_lshlrev_b32 v59, 2, v59")
    def xreduce(base, op):
        for adr in (58, 59):
            for t in range(3): e("ds_bpermute_b32 v%d, v%d, v%d" % (20 + t, adr, base + t))
            e("s_waitcnt lgkmcnt(0)"); drain()
            for t in range(3): e("%s v%d, v%d, v%d" % (op, base + t, base + t, 20 + t))
    stamp(0)
    e("s_waitcnt vmcnt(0)")
    run(0, first_idx(14))
    e("s_nop 7"); e("s_nop 1")
    for kk in range(8):
        for t in range(3):
            a0 = 64 + ((kk * 2) * 3 + t) * 4; a1 = a0 + 12
            e("v_cvt_pk_bf16_f32 v16, v%d, v%d" % (a0, a0 + 1)); e("v_cvt_pk_bf16_f32 v17, v%d, v%d" % (a0 + 2, a0 + 3))
            e("v_cvt_pk_bf16_f32 v18, v%d, v%d" % (a1, a1 + 1)); e("v_cvt_pk_bf16_f32 v19, v%d, v%d" % (a1 + 2, a1 + 3))
            q = (t * 8 + kk) * 4
            for i in range(4): e("v_accvgpr_write_b32 a%d, v%d" % (q + i, 16 + i))
    for t in range(3): e("v_mov_b32 v%d, 0xff800000" % (52 + t))
    stamp(1)
    for hh in range(32):
        run(first_idx(14) + hh * 8, first_idx(14) + hh * 8 + 8, spost(hh - 1) if hh else None, skip=3)
    e("s_nop 7"); e("s_nop 1")
    for x in spost(31): e(x)
    stamp(2)
    xreduce(52, "v_max_f32")
    e("s_mov_b32 s46, 0x3db8aa3b")
    for t in range(3): e("v_mul_f32 v%d, s46, v%d" % (52 + t, 52 + t))
    for t in range(3): e("v_mov_b32 v%d, 0" % (55 + t))
    for x in soft(0): e(x)
    e("s_nop 1")
    for j in range(16):
        run(first_idx(30 + j), first_idx(31 + j) if j < 15 else first_idx(46), soft(j + 1) if j < 15 else None, skip=0)
    stamp(3)
    xreduce(55, "v_add_f32")
    for t in range(3): e("v_rcp_f32 v%d, v%d" % (55 + t, 55 + t))
    e("s_nop 7")
    for t in range(3): e("v_mov_b32 v%d, v%d" % (116 + t, 55 + t))
    for kk in range(8):
        for t in range(3):
            a0 = ((kk * 2) * 3 + t) * 4; a1 = a0 + 12
            for i in range(4): e("v_accvgpr_read_b32 v%d, a%d" % (120 + i, a0 + i))
            for i in range(4): e("v_accvgpr_read_b32 v%d, a%d" % (124 + i, a1 + i))
            for i in range(8): e("v_mul_f32 v%d, v%d, v%d" % (120 + i, 120 + i, 116 + t))
            o = 16 + (t * 8 + kk) * 4
            for i in range(4): e("v_cvt_pk_bf16_f32 v%d, v%d, v%d" % (o + i, 120 + 2 * i, 121 + 2 * i))
    e("s_nop 1")
    run(first_idx(46), len(frags))
    stamp(4)
    e("s_nop 7"); e("s_nop 1")
    e("v_add_u32 v4, s44, v1"); e("v_mul_u32_u24 v4, 896, v4"); e("v_lshl_add_u32 v4, v2, 4, v4")
    e("v_add_u32 v5, 14336, v4"); e("v_add_u32 v6, 14336, v5")
    n = 0
    for kk in range(14):
        for t in range(3):
            o = 16 + (n % 8) * 4; n += 1
            regs = []
            for tile in range(2):
                x = ((kk * 2 + tile) * 3 + t) * 4
                if x < 192:
                    for i in range(4): e("v_accvgpr_read_b32 v%d, a%d" % (48 + tile * 4 + i, x + i))
                    regs.append(48 + tile * 4)
                else: regs.append(112 + x - 192)
            e("v_cvt_pk_bf16_f32 v%d, v%d, v%d" % (o, regs[0], regs[0] + 1)); e("v_cvt_pk_bf16_f32 v%d, v%d, v%d" % (o + 1, regs[0] + 2, regs[0] + 3))
            e("v_cvt_pk_bf16_f32 v%d, v%d, v%d" % (o + 2, regs[1], regs[1] + 1)); e("v_cvt_pk_bf16_f32 v%d, v%d, v%d" % (o + 3, regs[1] + 2, regs[1] + 3))
            e("buffer_store_dwordx4 v[%d:%d], v%d, s[40:43], 0 offen offset:%d" % (o, o + 3, 4 + t, kk * 64))
    e("s_waitcnt vmcnt(0)")
    stamp(5)
    e("s_branch L1_end")

    e("L1_loader:")
    e("s_lshr_b32 s48, s2, 4"); e("s_add_u32 s48, s48, s2")
    e("v_lshrrev_b32 v1, 5, v0"); e("v_and_b32 v2, 31, v0")
    for p in range(8):
        sw = 2 * (p & 1) + 4 * (p >> 1)
        e("v_add_u32 v3, %d, v1" % sw); e("v_xor_b32 v3, v3, v2"); e("v_lshlrev_b32 v3, 4, v3")
        e("v_lshl_add_u32 v%d, v1, 9, v3" % (8 + p))
    for p in range(2):
        e("v_add_u32 v3, %d, v1" % (2 * p)); e("v_lshlrev_b32 v3, 2, v3"); e("v_xor_b32 v3, v3, v2"); e("v_lshlrev_b32 v3, 4, v3")
        e("v_lshl_add_u32 v%d, v1, 9, v3" % (16 + p)); e("v_lshl_add_u32 v%d, v1, 13, v3" % (18 + p))
    for i in range(14):
        e("v_add_u32 v3, %d, v0" % (i * 64))
        e("v_lshrrev_b32 v4, 3, v3"); e("v_mul_u32_u24 v4, 9363, v4"); e("v_lshrrev_b32 v4, 16, v4")
        e("v_mul_u32_u24 v5, 56, v4"); e("v_sub_u32 v5, v3, v5")
        e("v_lshrrev_b32 v6, 1, v4"); e("v_and_b32 v6, 1, v6"); e("v_lshlrev_b32 v6, 2, v6"); e("v_xor_b32 v5, v5, v6")
        e("v_mul_u32_u24 v4, 896, v4"); e("v_lshl_add_u32 v%d, v5, 4, v4" % (20 + i))
    cnt = {}
    def issue(s):
        n = 14 if s >= 46 else 16
        cnt[s] = n
        if NOLOAD: return
        for i in range(n):
            e("s_mov_b32 m0, %d" % ((s % D) * 16384 + i * 1024))
            if s < 14:
                e("s_mov_b32 s47, %d" % ((s * 32 + 2 * i) * 8192))
                e("buffer_load_dwordx4 v%d, s[36:39], s47 offen lds" % (18 + (i & 1)))
            elif s < 46:
                if i == 0: e("s_add_u32 s49, s48, %d" % ((s - 14) & 15)); e("s_and_b32 s49, s49, 15"); e("s_lshl_b32 s49, s49, 14")
                e("s_add_u32 s47, s49, %d" % (i * 1024))
                if s < 30: e("buffer_load_dwordx4 v%d, s[28:31], s47 offen nt lds" % (8 + ((i & 1) | ((i >> 2) << 1))))
                else: e("buffer_load_dwordx4 v%d, s[32:35], s47 offen nt lds" % (16 + (i & 1)))
            else:
                e("s_mov_b32 s47, %d" % ((s - 46) * 14336))
                e("buffer_load_dwordx4 v%d, s[64:67], s47 offen lds" % (20 + i))
    issued = 0
    for s in range(D - 2):
        if s >= 3: e("s_waitcnt vmcnt(47)")
        issue(s); issued += 1
    for s in range(NSLOT):
        after = sum(cnt[x] for x in range(s + 1, issued))
        e("s_waitcnt vmcnt(%d)" % min(after, 48))
        e("s_barrier")
        if issued < NSLOT:
            e("s_waitcnt vmcnt(47)")
            issue(issued); issued += 1
    e("L1_end:")
    e("s_endpgm")

def kernel2():
    e(".globl reduce_kernel"); e(".p2align 8"); e(".type reduce_kernel,@function")
    e("reduce_kernel:")
    e("s_cmp_ge_u32 s2, 504"); e("s_cbranch_scc1 L2_end")
    e("s_load_dwordx2 s[14:15], s[0:1], 80"); e("s_load_dwordx2 s[16:17], s[0:1], 96")
    e("s_lshl_b32 s3, s2, 8"); e("v_add_u32 v1, s3, v0")
    e("v_lshrrev_b32 v2, 7, v1"); e("v_mul_u32_u24 v2, 1041, v2"); e("v_lshrrev_b32 v2, 16, v2")
    e("v_mul_u32_u24 v3, 8064, v2"); e("v_sub_u32 v3, v1, v3")
    e("s_mov_b32 s4, 2064384"); e("v_mul_lo_u32 v4, v2, s4"); e("v_lshl_add_u32 v4, v3, 4, v4")
    e("s_waitcnt lgkmcnt(0)")
    e("s_mov_b32 s20, s16"); e("s_mov_b32 s21, s17"); e("s_mov_b32 s22, 33030144"); e("s_mov_b32 s23, 0x20000")
    e("s_mov_b32 s24, s14"); e("s_mov_b32 s25, s15"); e("s_mov_b32 s26, 2064384"); e("s_mov_b32 s27, 0x20000")
    for h in range(16):
        e("s_mov_b32 s5, %d" % (h * 129024))
        e("buffer_load_dwordx4 v[%d:%d], v4, s[20:23], s5 offen" % (16 + h * 4, 19 + h * 4))
    e("v_lshrrev_b32 v5, 3, v3"); e("v_mul_u32_u24 v5, 9363, v5"); e("v_lshrrev_b32 v5, 16, v5"); e("v_mul_u32_u24 v6, 56, v5"); e("v_sub_u32 v6, v3, v6")
    e("v_and_b32 v7, 7, v2"); e("v_mul_u32_u24 v7, 144, v7"); e("v_add_u32 v7, v7, v5"); e("v_mul_u32_u24 v7, 1792, v7")
    e("v_lshrrev_b32 v8, 3, v2"); e("v_mul_u32_u24 v8, 896, v8"); e("v_add_u32 v7, v7, v8"); e("v_lshl_add_u32 v7, v6, 4, v7")
    for i in range(8): e("v_mov_b32 v%d, 0" % (8 + i))
    for h in range(16):
        e("s_waitcnt vmcnt(%d)" % (15 - h))
        for i in range(4):
            r = 16 + h * 4 + i
            e("v_lshlrev_b32 v80, 16, v%d" % r); e("v_and_b32 v81, 0xffff0000, v%d" % r)
            e("v_add_f32 v%d, v%d, v80" % (8 + 2 * i, 8 + 2 * i)); e("v_add_f32 v%d, v%d, v81" % (9 + 2 * i, 9 + 2 * i))
    for i in range(4): e("v_cvt_pk_bf16_f32 v%d, v%d, v%d" % (84 + i, 8 + 2 * i, 9 + 2 * i))
    e("buffer_store_dwordx4 v[84:87], v7, s[24:27], 0 offen")
    e("s_waitcnt vmcnt(0)")
    e("L2_end:")
    e("s_endpgm")

def desc(name, nv, ao):
    L.append(""".section .rodata,"a"
.p2align 6
.amdhsa_kernel %s
  .amdhsa_next_free_vgpr %d
  .amdhsa_next_free_sgpr 102
  .amdhsa_accum_offset %d
  .amdhsa_group_segment_fixed_size 0
  .amdhsa_kernarg_size 104
  .amdhsa_user_sgpr_count 2
  .amdhsa_user_sgpr_kernarg_segment_ptr 1
  .amdhsa_system_sgpr_workgroup_id_x 1
.end_amdhsa_kernel
.text""" % (name, nv, ao))

L.append(HDR.rstrip("\n"))
L.append("; @launch kernel=attn_kernel grid=(256,1,1) block=(256,1,1) lds=%d" % LDS1)
L.append("; @launch kernel=reduce_kernel grid=(504,1,1) block=(256,1,1) lds=0")
L.append('.amdgcn_target "amdgcn-amd-amdhsa--gfx950"')
L.append(".text")
kernel1(); desc("attn_kernel", 512, 256)
kernel2(); desc("reduce_kernel", 88, 88)
open(OUT or "cdna_kernels/%s.s" % NAME, "w").write("\n".join(L) + "\n")
```

```python
import sys, os
STAMP = os.environ.get("STAMP"); NOLOAD = os.environ.get("NOLOAD"); OUT = os.environ.get("OUT")
NAME = "concat_heads__mha_block_cached__gqa_block_cached__near_ridge"
L = []
def e(s=""): L.append("    " + s if s and not s.endswith(":") else s)
D = 10
NWQ = int(os.environ.get("NWQ", "5"))
NSLOT = 62
LDS1 = D * 16384
HDR = open("cdna_kernels/%s.s.ref" % NAME).read().split("; Override launch")[0]
FB = 192
NFB = 16
PF = 6

def stamp(i):
    if not STAMP: return
    e("s_memtime s[60:61]"); e("s_waitcnt lgkmcnt(0)"); e("v_mov_b32 v14, s60"); e("v_mov_b32 v15, %d" % (i*4))
    e("s_lshl_b32 s62, s9, 6"); e("v_add_u32 v15, s62, v15")
    e("buffer_store_dword v14, v15, s[56:59], 0 offen")

NPRE = 6
LORDER = list(range(14)) + list(range(14 + NPRE, NSLOT))
POS = {14 + i: D - NPRE + i for i in range(NPRE)}
ISSUE_AT = {}
def _cnt(x): return 14 if x >= 46 else 16
_free = list(range(D - NPRE)); _q = list(LORDER); _iss = []
def _try(st):
    while _q and _free:
        pend = [y for y in _iss if y > st]
        aft = sum(_cnt(y) for y in pend[1:]) if pend else -16
        if aft + _cnt(_q[0]) > 48: break
        x = _q.pop(0); POS[x] = _free.pop(0); ISSUE_AT[x] = st; _iss.append(x)
_try(-1)
for st in range(NSLOT):
    assert st in POS, st
    if st >= 2: _free.append(POS[st - 2])
    _try(st)
def kernel1():
    e(".globl attn_kernel"); e(".p2align 8"); e(".type attn_kernel,@function")
    e("attn_kernel:")
    e("s_cmp_ge_u32 s2, 256"); e("s_cbranch_scc1 L1_end")
    e("s_and_b32 s3, s2, 7"); e("s_lshr_b32 s4, s2, 3")
    e("s_lshr_b32 s5, s3, 2")
    e("s_and_b32 s6, s3, 3"); e("s_lshl_b32 s6, s6, 2"); e("s_and_b32 s7, s4, 3"); e("s_add_u32 s6, s6, s7")
    e("s_lshr_b32 s7, s4, 2")
    e("s_mul_i32 s8, s5, 40")
    e("s_add_u32 s10, s0, s8"); e("s_addc_u32 s11, s1, 0")
    e("s_load_dwordx8 s[12:19], s[10:11], 0")
    e("s_load_dwordx2 s[52:53], s[10:11], 32")
    e("s_load_dwordx2 s[20:21], s[0:1], 96")
    if STAMP:
        e("s_load_dwordx2 s[56:57], s[0:1], 88"); e("s_mov_b32 s59, 0x20000"); e("s_cmp_eq_u32 s2, 0"); e("s_cselect_b32 s58, 256, 0")
    e("v_lshrrev_b32 v1, 6, v0"); e("s_nop 0"); e("v_readfirstlane_b32 s9, v1")
    e("v_and_b32 v0, 63, v0")
    e("s_waitcnt lgkmcnt(0)")
    e("s_mul_i32 s22, s7, 129024")
    e("s_add_u32 s24, s12, s22"); e("s_addc_u32 s25, s13, 0"); e("s_mov_b32 s26, 129024"); e("s_mov_b32 s27, 0x20000")
    e("s_lshl_b32 s23, s7, 4"); e("s_add_u32 s23, s23, s6"); e("s_lshl_b32 s22, s23, 18")
    e("s_add_u32 s28, s14, s22"); e("s_addc_u32 s29, s15, 0"); e("s_mov_b32 s30, 262144"); e("s_mov_b32 s31, 0x20000")
    e("s_add_u32 s32, s16, s22"); e("s_addc_u32 s33, s17, 0"); e("s_mov_b32 s34, 262144"); e("s_mov_b32 s35, 0x20000")
    e("s_lshl_b32 s22, s6, 9")
    e("s_add_u32 s36, s18, s22"); e("s_addc_u32 s37, s19, 0"); e("s_sub_u32 s38, 3670016, s22"); e("s_mov_b32 s39, 0x20000")
    e("s_lshl_b32 s22, s5, 7"); e("s_add_u32 s22, s22, s23"); e("s_mul_i32 s22, s22, 129024")
    e("s_add_u32 s40, s20, s22"); e("s_addc_u32 s41, s21, 0"); e("s_mov_b32 s42, 129024"); e("s_mov_b32 s43, 0x20000")
    e("s_mul_i32 s22, s6, 229376")
    e("s_add_u32 s64, s52, s22"); e("s_addc_u32 s65, s53, 0"); e("s_mov_b32 s66, 229376"); e("s_mov_b32 s67, 0x20000")
    e("s_cmp_eq_u32 s9, 3"); e("s_cbranch_scc1 L1_loader")

    e("v_and_b32 v1, 15, v0"); e("v_lshrrev_b32 v2, 4, v0"); e("v_lshrrev_b32 v3, 2, v1"); e("v_and_b32 v16, 3, v0")
    e("s_mul_i32 s44, s9, 48")
    e("v_add_u32 v17, s44, v1"); e("v_mul_u32_u24 v17, 896, v17"); e("v_lshl_add_u32 v18, v2, 4, v17")
    e("v_add_u32 v19, 14336, v18"); e("v_add_u32 v20, 14336, v19")
    def xload(k0, k1):
        for ks in range(k0, k1):
            for t in range(3):
                r = (t * 14 + ks) * 4
                e("buffer_load_dwordx4 a[%d:%d], v%d, s[24:27], 0 offen offset:%d" % (r, r + 3, 18 + t, ks * 64))
    xload(0, 7)
    e("s_lshr_b32 s48, s2, 4"); e("s_add_u32 s48, s48, s2")
    e("v_lshrrev_b32 v30, 5, v0"); e("v_and_b32 v31, 31, v0")
    for p in range(8):
        sw = 2 * (p & 1) + 4 * (p >> 1)
        e("v_add_u32 v32, %d, v30" % sw); e("v_xor_b32 v32, v32, v31"); e("v_lshlrev_b32 v32, 4, v32")
        e("v_lshl_add_u32 v%d, v30, 9, v32" % (40 + p))
    e("s_lshl_b32 s50, s9, 1")
    if not NOLOAD:
        for u in range(2):
            e("s_add_u32 s49, s48, s50"); e("s_add_u32 s49, s49, %d" % u); e("s_and_b32 s49, s49, 15"); e("s_lshl_b32 s49, s49, 14")
            e("s_add_u32 s51, s50, %d" % (D - NPRE + u)); e("s_lshl_b32 s51, s51, 14")
            for i in range(16):
                e("s_add_u32 s47, s51, %d" % (i * 1024)); e("s_mov_b32 m0, s47"); e("s_add_u32 s47, s49, %d" % (i * 1024))
                e("buffer_load_dwordx4 v%d, s[28:31], s47 offen nt lds" % (40 + ((i & 1) | ((i >> 2) << 1))))
    e("v_lshl_add_u32 v21, v2, 3, v3"); e("v_lshlrev_b32 v21, 9, v21"); e("v_lshl_add_u32 v21, v16, 4, v21")
    for i in range(4):
        e("v_xor_b32 v22, %d, v3" % i); e("v_lshl_add_u32 v%d, v22, 6, v21" % (4 + i))
    e("v_lshl_add_u32 v21, v3, 3, v16"); e("v_lshlrev_b32 v21, 9, v21")
    e("v_xor_b32 v22, v2, v16"); e("v_lshl_add_u32 v21, v22, 4, v21")
    for i in range(4):
        e("v_xor_b32 v22, %d, v3" % i); e("v_lshl_add_u32 v%d, v22, 6, v21" % (8 + i))
    e("v_and_b32 v21, 1, v2"); e("v_lshl_add_u32 v21, v21, 3, v3"); e("v_mul_u32_u24 v21, 896, v21")
    e("v_lshl_add_u32 v21, v16, 4, v21")
    e("v_lshrrev_b32 v22, 1, v3"); e("v_lshl_add_u32 v12, v22, 6, v21"); e("v_xor_b32 v22, 1, v22"); e("v_lshl_add_u32 v13, v22, 6, v21")

    CUR = 60
    def kind(s): return "wq" if s < 14 else "k" if s < 30 else "v" if s < 46 else "wo"
    frags = []
    for s in range(NSLOT):
        k = kind(s)
        if k == "wo":
            if s % 2 == 1: continue
            for f in range(28): frags.append((s, f))
        else:
            for f in range(16): frags.append((s, f))
    lds_q = []
    state = {"issued": 0}
    def issue_read(idx):
        s, f = frags[idx]; k = kind(s); fb = FB + (idx % NFB) * 4
        if f == 0:
            e("s_barrier")
            if k == "wo":
                e("s_waitcnt lgkmcnt(0)"); lds_q.clear(); e("s_barrier")
            base = POS[s] * 16384
            src = {"wq": 4, "v": 4, "k": 8, "wo": 12}[k]
            for i in range(2 if k == "wo" else 4):
                e("v_add_u32 v%d, %d, v%d" % ((8 if k == "wo" else CUR) + i, base, src + i))
            if k == "wo":
                e("s_mov_b32 s50, %d" % ((POS[s + 1] - POS[s]) * 16384))
                for i in range(2): e("v_mad_i32_i24 v%d, v11, s50, v%d" % (8 + i, 8 + i))
        if k == "k":
            tile, ks = f >> 3, f & 7
            e("ds_read_b128 a[%d:%d], v%d offset:%d" % (fb, fb + 3, CUR + (ks & 3), (ks >> 2) * 256 + tile * 2048)); n = 1
        elif k == "wo":
            kk, tile = f >> 1, f & 1
            off = (kk >> 1) * 128 + tile * 8
            e("ds_read_b64_tr_b16 a[%d:%d], v%d offset:%d" % (fb, fb + 1, 8 + (kk & 1), off))
            e("ds_read_b64_tr_b16 a[%d:%d], v%d offset:%d" % (fb + 2, fb + 3, 8 + (kk & 1), off + 3584)); n = 2
        else:
            kk, tile = f >> 1, f & 1
            off = (kk >> 2) * 256 + tile * 8
            e("ds_read_b64_tr_b16 a[%d:%d], v%d offset:%d" % (fb, fb + 1, CUR + (kk & 3), off))
            e("ds_read_b64_tr_b16 a[%d:%d], v%d offset:%d" % (fb + 2, fb + 3, CUR + (kk & 3), off + 2048)); n = 2
        lds_q.append((idx, n)); state["issued"] = idx + 1
    def wait_frag(idx):
        while lds_q and lds_q[0][0] <= idx: lds_q.pop(0)
        e("s_waitcnt lgkmcnt(%d)" % sum(n for _, n in lds_q))
    def drain():
        lds_q.clear()
    def oacc(f, t):
        x = (f * 3 + t) * 4
        return "a[%d:%d]" % (x, x + 3) if x < 192 else "v[%d:%d]" % (112 + x - 192, 112 + x - 192 + 3)
    def mfmas(idx):
        s, f = frags[idx]; k = kind(s); fb = FB + (idx % NFB) * 4
        out = []
        for t in range(3):
            if k == "wq":
                a = 64 + (f * 3 + t) * 4; d = "v[%d:%d]" % (a, a + 3); b = (t * 14 + s) * 4; bs = "a[%d:%d]" % (b, b + 3); first = s == 0
            elif k == "k":
                j = s - 14; tile, ks = f >> 3, f & 7
                a = 16 + (tile * 3 + t) * 4; d = "v[%d:%d]" % (a, a + 3); q = (t * 8 + ks) * 4; bs = "a[%d:%d]" % (q, q + 3); first = ks == 0
            elif k == "v":
                j = s - 30; a = (f * 3 + t) * 4; d = "a[%d:%d]" % (a, a + 3); p = 64 + (j * 3 + t) * 4; bs = "v[%d:%d]" % (p, p + 3); first = j == 0
            else:
                ks = (s - 46) // 2; d = oacc(f, t); o = 16 + (t * 8 + ks) * 4; bs = "v[%d:%d]" % (o, o + 3); first = ks == 0
            out.append("v_mfma_f32_16x16x32_bf16 %s, a[%d:%d], %s, %s" % (d, fb, fb + 3, bs, "0" if first else d))
        return out
    def spost(hh):
        j, tile = hh >> 1, hh & 1
        r = []
        for t in range(3):
            d0 = 16 + (tile * 3 + t) * 4; p = 64 + (j * 3 + t) * 4 + 2 * tile; m = 52 + t
            r += ["v_max3_f32 v%d, v%d, v%d, v%d" % (m, m, d0, d0 + 1), "v_cvt_pk_bf16_f32 v%d, v%d, v%d" % (p, d0, d0 + 1),
                  "v_max3_f32 v%d, v%d, v%d, v%d" % (m, m, d0 + 2, d0 + 3), "v_cvt_pk_bf16_f32 v%d, v%d, v%d" % (p + 1, d0 + 2, d0 + 3)]
        return r
    def soft(j):
        r = []
        for t in range(3):
            p = 64 + (j * 3 + t) * 4; m = 52 + t; sm = 55 + t
            for i in range(0, 4, 2):
                for u in range(2):
                    x = 16 + 2 * u
                    r += ["v_lshlrev_b32 v%d, 16, v%d" % (x, p + i + u), "v_and_b32 v%d, 0xffff0000, v%d" % (x + 1, p + i + u)]
                for x in range(16, 20): r.append("v_fma_f32 v%d, v%d, s46, -v%d" % (x, x, m))
                for x in range(16, 20): r.append("v_exp_f32 v%d, v%d" % (x, x))
                r += ["v_add_f32 v%d, v%d, v16" % (sm, sm), "v_cvt_pk_bf16_f32 v%d, v16, v17" % (p + i),
                      "v_add_f32 v%d, v%d, v17" % (sm, sm), "v_cvt_pk_bf16_f32 v%d, v18, v19" % (p + i + 1),
                      "v_add_f32 v%d, v%d, v18" % (sm, sm), "v_add_f32 v%d, v%d, v19" % (sm, sm)]
        return r
    def run(idx0, idx1, fill=None, skip=2):
        fill = list(fill or [])
        nm = (idx1 - idx0 - skip) * 3
        per = -(-len(fill) // nm) if fill else 0
        for idx in range(idx0, idx1):
            while state["issued"] < min(len(frags), idx + PF): issue_read(state["issued"])
            wait_frag(idx)
            for m in mfmas(idx):
                e(m)
                if idx - idx0 >= skip:
                    for _ in range(per):
                        if fill: e(fill.pop(0))
        for x in fill: e(x)
    def first_idx(s): return next(i for i, (a, b) in enumerate(frags) if a == s)
    e("v_xor_b32 v58, 16, v0"); e("v_lshlrev_b32 v58, 2, v58"); e("v_xor_b32 v59, 32, v0"); e("v_lshlrev_b32 v59, 2, v59")
    def xreduce(base, op):
        for adr in (58, 59):
            for t in range(3): e("ds_bpermute_b32 v%d, v%d, v%d" % (20 + t, adr, base + t))
            e("s_waitcnt lgkmcnt(0)"); drain()
            for t in range(3): e("%s v%d, v%d, v%d" % (op, base + t, base + t, 20 + t))
    stamp(0)
    for sq in range(14):
        KK = 0 if NOLOAD else 32
        if sq < 4: e("s_waitcnt vmcnt(%d)" % (21 - 3 * (sq + 1) + KK))
        elif sq < 7: e("s_waitcnt vmcnt(%d)" % (21 - 3 * (sq + 1) + KK + 21))
        else: e("s_waitcnt vmcnt(%d)" % (42 - 3 * (sq + 1)))
        if sq == 3: xload(7, 14)
        run(first_idx(sq), first_idx(sq + 1))
    e("s_nop 7"); e("s_nop 1")
    for kk in range(8):
        for t in range(3):
            a0 = 64 + ((kk * 2) * 3 + t) * 4; a1 = a0 + 12
            e("v_cvt_pk_bf16_f32 v16, v%d, v%d" % (a0, a0 + 1)); e("v_cvt_pk_bf16_f32 v17, v%d, v%d" % (a0 + 2, a0 + 3))
            e("v_cvt_pk_bf16_f32 v18, v%d, v%d" % (a1, a1 + 1)); e("v_cvt_pk_bf16_f32 v19, v%d, v%d" % (a1 + 2, a1 + 3))
            q = (t * 8 + kk) * 4
            for i in range(4): e("v_accvgpr_write_b32 a%d, v%d" % (q + i, 16 + i))
    for t in range(3): e("v_mov_b32 v%d, 0xff800000" % (52 + t))
    stamp(1)
    for hh in range(32):
        run(first_idx(14) + hh * 8, first_idx(14) + hh * 8 + 8, spost(hh - 1) if hh else None, skip=3)
    e("s_nop 7"); e("s_nop 1")
    for x in spost(31): e(x)
    e("v_lshrrev_b32 v11, 1, v2")
    stamp(2)
    xreduce(52, "v_max_f32")
    e("s_mov_b32 s46, 0x3db8aa3b")
    for t in range(3): e("v_mul_f32 v%d, s46, v%d" % (52 + t, 52 + t))
    for t in range(3): e("v_mov_b32 v%d, 0" % (55 + t))
    for x in soft(0): e(x)
    e("s_nop 1")
    for j in range(16):
        run(first_idx(30 + j), first_idx(31 + j) if j < 15 else first_idx(46), soft(j + 1) if j < 15 else None, skip=0)
    stamp(3)
    xreduce(55, "v_add_f32")
    for t in range(3): e("v_rcp_f32 v%d, v%d" % (55 + t, 55 + t))
    e("s_nop 7")
    for t in range(3): e("v_mov_b32 v%d, v%d" % (116 + t, 55 + t))
    for kk in range(8):
        for t in range(3):
            a0 = ((kk * 2) * 3 + t) * 4; a1 = a0 + 12
            for i in range(4): e("v_accvgpr_read_b32 v%d, a%d" % (120 + i, a0 + i))
            for i in range(4): e("v_accvgpr_read_b32 v%d, a%d" % (124 + i, a1 + i))
            for i in range(8): e("v_mul_f32 v%d, v%d, v%d" % (120 + i, 120 + i, 116 + t))
            o = 16 + (t * 8 + kk) * 4
            for i in range(4): e("v_cvt_pk_bf16_f32 v%d, v%d, v%d" % (o + i, 120 + 2 * i, 121 + 2 * i))
    e("s_nop 1")
    run(first_idx(46), len(frags))
    stamp(4)
    e("s_nop 7"); e("s_nop 1")
    e("v_add_u32 v4, s44, v1"); e("v_mul_u32_u24 v4, 896, v4"); e("v_lshl_add_u32 v4, v2, 4, v4")
    e("v_add_u32 v5, 14336, v4"); e("v_add_u32 v6, 14336, v5")
    n = 0
    for kk in range(14):
        for t in range(3):
            o = 16 + (n % 8) * 4; n += 1
            regs = []
            for tile in range(2):
                x = ((kk * 2 + tile) * 3 + t) * 4
                if x < 192:
                    for i in range(4): e("v_accvgpr_read_b32 v%d, a%d" % (48 + tile * 4 + i, x + i))
                    regs.append(48 + tile * 4)
                else: regs.append(112 + x - 192)
            e("v_cvt_pk_bf16_f32 v%d, v%d, v%d" % (o, regs[0], regs[0] + 1)); e("v_cvt_pk_bf16_f32 v%d, v%d, v%d" % (o + 1, regs[0] + 2, regs[0] + 3))
            e("v_cvt_pk_bf16_f32 v%d, v%d, v%d" % (o + 2, regs[1], regs[1] + 1)); e("v_cvt_pk_bf16_f32 v%d, v%d, v%d" % (o + 3, regs[1] + 2, regs[1] + 3))
            e("buffer_store_dwordx4 v[%d:%d], v%d, s[40:43], 0 offen offset:%d" % (o, o + 3, 4 + t, kk * 64))
    e("s_waitcnt vmcnt(0)")
    stamp(5)
    e("s_branch L1_end")

    e("L1_loader:")
    e("s_lshr_b32 s48, s2, 4"); e("s_add_u32 s48, s48, s2")
    e("v_lshrrev_b32 v1, 5, v0"); e("v_and_b32 v2, 31, v0")
    for p in range(8):
        sw = 2 * (p & 1) + 4 * (p >> 1)
        e("v_add_u32 v3, %d, v1" % sw); e("v_xor_b32 v3, v3, v2"); e("v_lshlrev_b32 v3, 4, v3")
        e("v_lshl_add_u32 v%d, v1, 9, v3" % (8 + p))
    for p in range(2):
        e("v_add_u32 v3, %d, v1" % (2 * p)); e("v_lshlrev_b32 v3, 2, v3"); e("v_xor_b32 v3, v3, v2"); e("v_lshlrev_b32 v3, 4, v3")
        e("v_lshl_add_u32 v%d, v1, 9, v3" % (16 + p)); e("v_lshl_add_u32 v%d, v1, 13, v3" % (18 + p))
    for i in range(14):
        e("v_add_u32 v3, %d, v0" % (i * 64))
        e("v_lshrrev_b32 v4, 3, v3"); e("v_mul_u32_u24 v4, 9363, v4"); e("v_lshrrev_b32 v4, 16, v4")
        e("v_mul_u32_u24 v5, 56, v4"); e("v_sub_u32 v5, v3, v5")
        e("v_lshrrev_b32 v6, 1, v4"); e("v_and_b32 v6, 1, v6"); e("v_lshlrev_b32 v6, 2, v6"); e("v_xor_b32 v5, v5, v6")
        e("v_mul_u32_u24 v4, 896, v4"); e("v_lshl_add_u32 v%d, v5, 4, v4" % (20 + i))
    cnt = {}
    def issue(s):
        n = 14 if s >= 46 else 16
        cnt[s] = n
        if NOLOAD: return
        for i in range(n):
            e("s_mov_b32 m0, %d" % (POS[s] * 16384 + i * 1024))
            if s < 14:
                e("s_mov_b32 s47, %d" % ((s * 32 + 2 * i) * 8192))
                e("buffer_load_dwordx4 v%d, s[36:39], s47 offen lds" % (18 + (i & 1)))
            elif s < 46:
                if i == 0: e("s_add_u32 s49, s48, %d" % ((s - 14) & 15)); e("s_and_b32 s49, s49, 15"); e("s_lshl_b32 s49, s49, 14")
                e("s_add_u32 s47, s49, %d" % (i * 1024))
                if s < 30: e("buffer_load_dwordx4 v%d, s[28:31], s47 offen nt lds" % (8 + ((i & 1) | ((i >> 2) << 1))))
                else: e("buffer_load_dwordx4 v%d, s[32:35], s47 offen nt lds" % (16 + (i & 1)))
            else:
                e("s_mov_b32 s47, %d" % ((s - 46) * 14336))
                e("buffer_load_dwordx4 v%d, s[64:67], s47 offen lds" % (20 + i))
    order = []
    def do_issue(x):
        issue(x); order.append(x)
    for x in LORDER:
        if ISSUE_AT[x] == -1: do_issue(x)
    for st in range(NSLOT):
        if st in order:
            after = sum(cnt[y] for y in order[order.index(st) + 1:])
            assert after <= 48
            e("s_waitcnt vmcnt(%d)" % after)
        e("s_barrier")
        for x in LORDER:
            if ISSUE_AT[x] == st: do_issue(x)
    e("L1_end:")
    e("s_endpgm")

def kernel2():
    e(".globl reduce_kernel"); e(".p2align 8"); e(".type reduce_kernel,@function")
    e("reduce_kernel:")
    e("s_cmp_ge_u32 s2, 504"); e("s_cbranch_scc1 L2_end")
    e("s_load_dwordx2 s[14:15], s[0:1], 80"); e("s_load_dwordx2 s[16:17], s[0:1], 96")
    e("s_lshl_b32 s3, s2, 8"); e("v_add_u32 v1, s3, v0")
    e("v_lshrrev_b32 v2, 7, v1"); e("v_mul_u32_u24 v2, 1041, v2"); e("v_lshrrev_b32 v2, 16, v2")
    e("v_mul_u32_u24 v3, 8064, v2"); e("v_sub_u32 v3, v1, v3")
    e("s_mov_b32 s4, 2064384"); e("v_mul_lo_u32 v4, v2, s4"); e("v_lshl_add_u32 v4, v3, 4, v4")
    e("s_waitcnt lgkmcnt(0)")
    e("s_mov_b32 s20, s16"); e("s_mov_b32 s21, s17"); e("s_mov_b32 s22, 33030144"); e("s_mov_b32 s23, 0x20000")
    e("s_mov_b32 s24, s14"); e("s_mov_b32 s25, s15"); e("s_mov_b32 s26, 2064384"); e("s_mov_b32 s27, 0x20000")
    for h in range(16):
        e("s_mov_b32 s5, %d" % (h * 129024))
        e("buffer_load_dwordx4 v[%d:%d], v4, s[20:23], s5 offen" % (16 + h * 4, 19 + h * 4))
    e("v_lshrrev_b32 v5, 3, v3"); e("v_mul_u32_u24 v5, 9363, v5"); e("v_lshrrev_b32 v5, 16, v5"); e("v_mul_u32_u24 v6, 56, v5"); e("v_sub_u32 v6, v3, v6")
    e("v_and_b32 v7, 7, v2"); e("v_mul_u32_u24 v7, 144, v7"); e("v_add_u32 v7, v7, v5"); e("v_mul_u32_u24 v7, 1792, v7")
    e("v_lshrrev_b32 v8, 3, v2"); e("v_mul_u32_u24 v8, 896, v8"); e("v_add_u32 v7, v7, v8"); e("v_lshl_add_u32 v7, v6, 4, v7")
    for i in range(8): e("v_mov_b32 v%d, 0" % (8 + i))
    for h in range(16):
        e("s_waitcnt vmcnt(%d)" % (15 - h))
        for i in range(4):
            r = 16 + h * 4 + i
            e("v_lshlrev_b32 v80, 16, v%d" % r); e("v_and_b32 v81, 0xffff0000, v%d" % r)
            e("v_add_f32 v%d, v%d, v80" % (8 + 2 * i, 8 + 2 * i)); e("v_add_f32 v%d, v%d, v81" % (9 + 2 * i, 9 + 2 * i))
    for i in range(4): e("v_cvt_pk_bf16_f32 v%d, v%d, v%d" % (84 + i, 8 + 2 * i, 9 + 2 * i))
    e("buffer_store_dwordx4 v[84:87], v7, s[24:27], 0 offen")
    e("s_waitcnt vmcnt(0)")
    e("L2_end:")
    e("s_endpgm")

def desc(name, nv, ao):
    L.append(""".section .rodata,"a"
.p2align 6
.amdhsa_kernel %s
  .amdhsa_next_free_vgpr %d
  .amdhsa_next_free_sgpr 102
  .amdhsa_accum_offset %d
  .amdhsa_group_segment_fixed_size 0
  .amdhsa_kernarg_size 104
  .amdhsa_user_sgpr_count 2
  .amdhsa_user_sgpr_kernarg_segment_ptr 1
  .amdhsa_system_sgpr_workgroup_id_x 1
.end_amdhsa_kernel
.text""" % (name, nv, ao))

L.append(HDR.rstrip("\n"))
L.append("; @launch kernel=attn_kernel grid=(256,1,1) block=(256,1,1) lds=%d" % LDS1)
L.append("; @launch kernel=reduce_kernel grid=(504,1,1) block=(256,1,1) lds=0")
L.append('.amdgcn_target "amdgcn-amd-amdhsa--gfx950"')
L.append(".text")
kernel1(); desc("attn_kernel", 512, 256)
kernel2(); desc("reduce_kernel", 88, 88)
open(OUT or "cdna_kernels/%s.s" % NAME, "w").write("\n".join(L) + "\n")
```

```python
import sys, os
STAMP = os.environ.get("STAMP"); NOLOAD = os.environ.get("NOLOAD"); OUT = os.environ.get("OUT")
NAME = "concat_heads__mha_block_cached__gqa_block_cached__near_ridge"
L = []
def e(s=""): L.append("    " + s if s and not s.endswith(":") else s)
D = 10
NWQ = int(os.environ.get("NWQ", "5"))
NSLOT = 62
LDS1 = D * 16384
HDR = open("cdna_kernels/%s.s.ref" % NAME).read().split("; Override launch")[0]
FB = 192
NFB = 16
PF = 6

def stamp(i):
    if not STAMP: return
    e("s_memtime s[60:61]"); e("s_waitcnt lgkmcnt(0)"); e("v_mov_b32 v14, s60"); e("v_mov_b32 v15, %d" % (i*4))
    e("s_lshl_b32 s62, s9, 6"); e("v_add_u32 v15, s62, v15")
    e("buffer_store_dword v14, v15, s[56:59], 0 offen")

NPRE = 6
LORDER = list(range(14)) + list(range(14 + NPRE, NSLOT))
POS = {14 + i: D - NPRE + i for i in range(NPRE)}
ISSUE_AT = {}
def _cnt(x): return 14 if x >= 46 else 16
_free = list(range(D - NPRE)); _q = list(LORDER); _iss = []
def _try(st):
    while _q and _free:
        pend = [y for y in _iss if y > st]
        aft = sum(_cnt(y) for y in pend[1:]) if pend else -16
        if aft + _cnt(_q[0]) > 48: break
        x = _q.pop(0); POS[x] = _free.pop(0); ISSUE_AT[x] = st; _iss.append(x)
_try(-1)
for st in range(NSLOT):
    assert st in POS, st
    if st >= 2: _free.append(POS[st - 2])
    _try(st)
def kernel1():
    e(".globl attn_kernel"); e(".p2align 8"); e(".type attn_kernel,@function")
    e("attn_kernel:")
    e("s_cmp_ge_u32 s2, 256"); e("s_cbranch_scc1 L1_end")
    e("s_and_b32 s3, s2, 7"); e("s_lshr_b32 s4, s2, 3")
    e("s_lshr_b32 s5, s3, 2")
    e("s_and_b32 s6, s3, 3"); e("s_lshl_b32 s6, s6, 2"); e("s_and_b32 s7, s4, 3"); e("s_add_u32 s6, s6, s7")
    e("s_lshr_b32 s7, s4, 2")
    e("s_mul_i32 s8, s5, 40")
    e("s_add_u32 s10, s0, s8"); e("s_addc_u32 s11, s1, 0")
    e("s_load_dwordx8 s[12:19], s[10:11], 0")
    e("s_load_dwordx2 s[52:53], s[10:11], 32")
    e("s_load_dwordx2 s[20:21], s[0:1], 96")
    if STAMP:
        e("s_load_dwordx2 s[56:57], s[0:1], 88"); e("s_mov_b32 s59, 0x20000"); e("s_cmp_eq_u32 s2, 0"); e("s_cselect_b32 s58, 256, 0")
    e("v_lshrrev_b32 v1, 6, v0"); e("s_nop 0"); e("v_readfirstlane_b32 s9, v1")
    e("v_and_b32 v0, 63, v0")
    e("s_waitcnt lgkmcnt(0)")
    e("s_mul_i32 s22, s7, 129024")
    e("s_add_u32 s24, s12, s22"); e("s_addc_u32 s25, s13, 0"); e("s_mov_b32 s26, 129024"); e("s_mov_b32 s27, 0x20000")
    e("s_lshl_b32 s23, s7, 4"); e("s_add_u32 s23, s23, s6"); e("s_lshl_b32 s22, s23, 18")
    e("s_add_u32 s28, s14, s22"); e("s_addc_u32 s29, s15, 0"); e("s_mov_b32 s30, 262144"); e("s_mov_b32 s31, 0x20000")
    e("s_add_u32 s32, s16, s22"); e("s_addc_u32 s33, s17, 0"); e("s_mov_b32 s34, 262144"); e("s_mov_b32 s35, 0x20000")
    e("s_lshl_b32 s22, s6, 9")
    e("s_add_u32 s36, s18, s22"); e("s_addc_u32 s37, s19, 0"); e("s_sub_u32 s38, 3670016, s22"); e("s_mov_b32 s39, 0x20000")
    e("s_lshl_b32 s22, s5, 7"); e("s_add_u32 s22, s22, s23"); e("s_mul_i32 s22, s22, 129024")
    e("s_add_u32 s40, s20, s22"); e("s_addc_u32 s41, s21, 0"); e("s_mov_b32 s42, 129024"); e("s_mov_b32 s43, 0x20000")
    e("s_mul_i32 s22, s6, 229376")
    e("s_add_u32 s64, s52, s22"); e("s_addc_u32 s65, s53, 0"); e("s_mov_b32 s66, 229376"); e("s_mov_b32 s67, 0x20000")
    e("s_cmp_eq_u32 s9, 3"); e("s_cbranch_scc1 L1_loader")

    e("v_and_b32 v1, 15, v0"); e("v_lshrrev_b32 v2, 4, v0"); e("v_lshrrev_b32 v3, 2, v1"); e("v_and_b32 v16, 3, v0")
    e("s_mul_i32 s44, s9, 48")
    e("v_add_u32 v17, s44, v1"); e("v_mul_u32_u24 v17, 896, v17"); e("v_lshl_add_u32 v18, v2, 4, v17")
    e("v_add_u32 v19, 14336, v18"); e("v_add_u32 v20, 14336, v19")
    def xload(k0, k1):
        for ks in range(k0, k1):
            for t in range(3):
                r = (t * 14 + ks) * 4
                e("buffer_load_dwordx4 a[%d:%d], v%d, s[24:27], 0 offen offset:%d" % (r, r + 3, 18 + t, ks * 64))
    xload(0, 7)
    e("s_lshr_b32 s48, s2, 4"); e("s_add_u32 s48, s48, s2")
    e("v_lshrrev_b32 v30, 5, v0"); e("v_and_b32 v31, 31, v0")
    for p in range(8):
        sw = 2 * (p & 1) + 4 * (p >> 1)
        e("v_add_u32 v32, %d, v30" % sw); e("v_xor_b32 v32, v32, v31"); e("v_lshlrev_b32 v32, 4, v32")
        e("v_lshl_add_u32 v%d, v30, 9, v32" % (40 + p))
    e("s_lshl_b32 s50, s9, 1")
    if not NOLOAD:
        for u in range(2):
            e("s_add_u32 s49, s48, s50"); e("s_add_u32 s49, s49, %d" % u); e("s_and_b32 s49, s49, 15"); e("s_lshl_b32 s49, s49, 14")
            e("s_add_u32 s51, s50, %d" % (D - NPRE + u)); e("s_lshl_b32 s51, s51, 14")
            for i in range(16):
                e("s_add_u32 s47, s51, %d" % (i * 1024)); e("s_mov_b32 m0, s47"); e("s_add_u32 s47, s49, %d" % (i * 1024))
                e("buffer_load_dwordx4 v%d, s[28:31], s47 offen nt lds" % (40 + ((i & 1) | ((i >> 2) << 1))))
    e("v_lshl_add_u32 v21, v2, 3, v3"); e("v_lshlrev_b32 v21, 9, v21"); e("v_lshl_add_u32 v21, v16, 4, v21")
    for i in range(4):
        e("v_xor_b32 v22, %d, v3" % i); e("v_lshl_add_u32 v%d, v22, 6, v21" % (4 + i))
    e("v_lshl_add_u32 v21, v3, 3, v16"); e("v_lshlrev_b32 v21, 9, v21")
    e("v_xor_b32 v22, v2, v16"); e("v_lshl_add_u32 v21, v22, 4, v21")
    for i in range(4):
        e("v_xor_b32 v22, %d, v3" % i); e("v_lshl_add_u32 v%d, v22, 6, v21" % (8 + i))
    e("v_and_b32 v21, 1, v2"); e("v_lshl_add_u32 v21, v21, 3, v3"); e("v_mul_u32_u24 v21, 896, v21")
    e("v_lshl_add_u32 v21, v16, 4, v21")
    e("v_lshrrev_b32 v22, 1, v3"); e("v_lshl_add_u32 v12, v22, 6, v21"); e("v_xor_b32 v22, 1, v22"); e("v_lshl_add_u32 v13, v22, 6, v21")

    CUR = 60
    def kind(s): return "wq" if s < 14 else "k" if s < 30 else "v" if s < 46 else "wo"
    frags = []
    for s in range(NSLOT):
        k = kind(s)
        if k == "wo":
            if s % 2 == 1: continue
            for f in range(28): frags.append((s, f))
        else:
            for f in range(16): frags.append((s, f))
    lds_q = []
    state = {"issued": 0}
    def issue_read(idx):
        s, f = frags[idx]; k = kind(s); fb = FB + (idx % NFB) * 4
        if f == 0:
            e("s_barrier")
            if k == "wo":
                e("s_waitcnt lgkmcnt(0)"); lds_q.clear(); e("s_barrier")
            base = POS[s] * 16384
            src = {"wq": 4, "v": 4, "k": 8, "wo": 12}[k]
            for i in range(2 if k == "wo" else 4):
                e("v_add_u32 v%d, %d, v%d" % ((8 if k == "wo" else CUR) + i, base, src + i))
            if k == "wo":
                e("s_mov_b32 s50, %d" % ((POS[s + 1] - POS[s]) * 16384))
                for i in range(2): e("v_mad_i32_i24 v%d, v11, s50, v%d" % (8 + i, 8 + i))
        if k == "k":
            tile, ks = f >> 3, f & 7
            e("ds_read_b128 a[%d:%d], v%d offset:%d" % (fb, fb + 3, CUR + (ks & 3), (ks >> 2) * 256 + tile * 2048)); n = 1
        elif k == "wo":
            kk, tile = f >> 1, f & 1
            off = (kk >> 1) * 128 + tile * 8
            e("ds_read_b64_tr_b16 a[%d:%d], v%d offset:%d" % (fb, fb + 1, 8 + (kk & 1), off))
            e("ds_read_b64_tr_b16 a[%d:%d], v%d offset:%d" % (fb + 2, fb + 3, 8 + (kk & 1), off + 3584)); n = 2
        else:
            kk, tile = f >> 1, f & 1
            off = (kk >> 2) * 256 + tile * 8
            e("ds_read_b64_tr_b16 a[%d:%d], v%d offset:%d" % (fb, fb + 1, CUR + (kk & 3), off))
            e("ds_read_b64_tr_b16 a[%d:%d], v%d offset:%d" % (fb + 2, fb + 3, CUR + (kk & 3), off + 2048)); n = 2
        lds_q.append((idx, n)); state["issued"] = idx + 1
    def wait_frag(idx):
        while lds_q and lds_q[0][0] <= idx: lds_q.pop(0)
        e("s_waitcnt lgkmcnt(%d)" % sum(n for _, n in lds_q))
    def drain():
        lds_q.clear()
    def oacc(f, t):
        x = (f * 3 + t) * 4
        return "a[%d:%d]" % (x, x + 3) if x < 192 else "v[%d:%d]" % (112 + x - 192, 112 + x - 192 + 3)
    def mfmas(idx):
        s, f = frags[idx]; k = kind(s); fb = FB + (idx % NFB) * 4
        out = []
        for t in range(3):
            if k == "wq":
                a = 64 + (f * 3 + t) * 4; d = "v[%d:%d]" % (a, a + 3); b = (t * 14 + s) * 4; bs = "a[%d:%d]" % (b, b + 3); first = s == 0
            elif k == "k":
                j = s - 14; tile, ks = f >> 3, f & 7
                a = 16 + (tile * 3 + t) * 4; d = "v[%d:%d]" % (a, a + 3); q = (t * 8 + ks) * 4; bs = "a[%d:%d]" % (q, q + 3); first = ks == 0
            elif k == "v":
                j = s - 30; a = (f * 3 + t) * 4; d = "a[%d:%d]" % (a, a + 3); p = 64 + (j * 3 + t) * 4; bs = "v[%d:%d]" % (p, p + 3); first = j == 0
            else:
                ks = (s - 46) // 2; d = oacc(f, t); o = 16 + (t * 8 + ks) * 4; bs = "v[%d:%d]" % (o, o + 3); first = ks == 0
            out.append("v_mfma_f32_16x16x32_bf16 %s, a[%d:%d], %s, %s" % (d, fb, fb + 3, bs, "0" if first else d))
        return out
    def spost(hh):
        j, tile = hh >> 1, hh & 1
        r = []
        for t in range(3):
            d0 = 16 + (tile * 3 + t) * 4; p = 64 + (j * 3 + t) * 4 + 2 * tile; m = 52 + t
            r += ["v_max3_f32 v%d, v%d, v%d, v%d" % (m, m, d0, d0 + 1), "v_cvt_pk_bf16_f32 v%d, v%d, v%d" % (p, d0, d0 + 1),
                  "v_max3_f32 v%d, v%d, v%d, v%d" % (m, m, d0 + 2, d0 + 3), "v_cvt_pk_bf16_f32 v%d, v%d, v%d" % (p + 1, d0 + 2, d0 + 3)]
        return r
    def soft(j):
        r = []
        for t in range(3):
            p = 64 + (j * 3 + t) * 4; m = 52 + t; sm = 55 + t
            for i in range(0, 4, 2):
                for u in range(2):
                    x = 16 + 2 * u
                    r += ["v_lshlrev_b32 v%d, 16, v%d" % (x, p + i + u), "v_and_b32 v%d, 0xffff0000, v%d" % (x + 1, p + i + u)]
                for x in range(16, 20): r.append("v_fma_f32 v%d, v%d, s46, -v%d" % (x, x, m))
                for x in range(16, 20): r.append("v_exp_f32 v%d, v%d" % (x, x))
                r += ["v_add_f32 v%d, v%d, v16" % (sm, sm), "v_cvt_pk_bf16_f32 v%d, v16, v17" % (p + i),
                      "v_add_f32 v%d, v%d, v17" % (sm, sm), "v_cvt_pk_bf16_f32 v%d, v18, v19" % (p + i + 1),
                      "v_add_f32 v%d, v%d, v18" % (sm, sm), "v_add_f32 v%d, v%d, v19" % (sm, sm)]
        return r
    def run(idx0, idx1, fill=None, skip=2):
        fill = list(fill or [])
        nm = (idx1 - idx0 - skip) * 3
        per = -(-len(fill) // nm) if fill else 0
        for idx in range(idx0, idx1):
            while state["issued"] < min(len(frags), idx + PF): issue_read(state["issued"])
            wait_frag(idx)
            for m in mfmas(idx):
                e(m)
                if idx - idx0 >= skip:
                    for _ in range(per):
                        if fill: e(fill.pop(0))
        for x in fill: e(x)
    def first_idx(s): return next(i for i, (a, b) in enumerate(frags) if a == s)
    e("v_xor_b32 v58, 16, v0"); e("v_lshlrev_b32 v58, 2, v58"); e("v_xor_b32 v59, 32, v0"); e("v_lshlrev_b32 v59, 2, v59")
    def xreduce(base, op):
        for adr in (58, 59):
            for t in range(3): e("ds_bpermute_b32 v%d, v%d, v%d" % (20 + t, adr, base + t))
            e("s_waitcnt lgkmcnt(0)"); drain()
            for t in range(3): e("%s v%d, v%d, v%d" % (op, base + t, base + t, 20 + t))
    stamp(0)
    for sq in range(14):
        KK = 0 if NOLOAD else 32
        if sq < 4: e("s_waitcnt vmcnt(%d)" % (21 - 3 * (sq + 1) + KK))
        elif sq < 7: e("s_waitcnt vmcnt(%d)" % (21 - 3 * (sq + 1) + KK + 21))
        else: e("s_waitcnt vmcnt(%d)" % (42 - 3 * (sq + 1)))
        if sq == 3: xload(7, 14)
        run(first_idx(sq), first_idx(sq + 1))
    e("s_nop 7"); e("s_nop 1")
    for kk in range(8):
        for t in range(3):
            a0 = 64 + ((kk * 2) * 3 + t) * 4; a1 = a0 + 12
            e("v_cvt_pk_bf16_f32 v16, v%d, v%d" % (a0, a0 + 1)); e("v_cvt_pk_bf16_f32 v17, v%d, v%d" % (a0 + 2, a0 + 3))
            e("v_cvt_pk_bf16_f32 v18, v%d, v%d" % (a1, a1 + 1)); e("v_cvt_pk_bf16_f32 v19, v%d, v%d" % (a1 + 2, a1 + 3))
            q = (t * 8 + kk) * 4
            for i in range(4): e("v_accvgpr_write_b32 a%d, v%d" % (q + i, 16 + i))
    for t in range(3): e("v_mov_b32 v%d, 0xff800000" % (52 + t))
    stamp(1)
    for hh in range(32):
        run(first_idx(14) + hh * 8, first_idx(14) + hh * 8 + 8, spost(hh - 1) if hh else None, skip=3)
    e("s_nop 7"); e("s_nop 1")
    for x in spost(31): e(x)
    e("v_lshrrev_b32 v11, 1, v2")
    stamp(2)
    xreduce(52, "v_max_f32")
    e("s_mov_b32 s46, 0x3db8aa3b")
    for t in range(3): e("v_mul_f32 v%d, s46, v%d" % (52 + t, 52 + t))
    for t in range(3): e("v_mov_b32 v%d, 0" % (55 + t))
    for x in soft(0): e(x)
    e("s_nop 1")
    for j in range(16):
        run(first_idx(30 + j), first_idx(31 + j) if j < 15 else first_idx(46), soft(j + 1) if j < 15 else None, skip=0)
    stamp(3)
    xreduce(55, "v_add_f32")
    for t in range(3): e("v_rcp_f32 v%d, v%d" % (55 + t, 55 + t))
    e("s_nop 7")
    for t in range(3): e("v_mov_b32 v%d, v%d" % (116 + t, 55 + t))
    for kk in range(8):
        for t in range(3):
            a0 = ((kk * 2) * 3 + t) * 4; a1 = a0 + 12
            for i in range(4): e("v_accvgpr_read_b32 v%d, a%d" % (120 + i, a0 + i))
            for i in range(4): e("v_accvgpr_read_b32 v%d, a%d" % (124 + i, a1 + i))
            for i in range(8): e("v_mul_f32 v%d, v%d, v%d" % (120 + i, 120 + i, 116 + t))
            o = 16 + (t * 8 + kk) * 4
            for i in range(4): e("v_cvt_pk_bf16_f32 v%d, v%d, v%d" % (o + i, 120 + 2 * i, 121 + 2 * i))
    e("s_nop 1")
    run(first_idx(46), len(frags))
    stamp(4)
    e("s_nop 7"); e("s_nop 1")
    e("v_add_u32 v4, s44, v1"); e("v_mul_u32_u24 v4, 896, v4"); e("v_lshl_add_u32 v4, v2, 4, v4")
    e("v_add_u32 v5, 14336, v4"); e("v_add_u32 v6, 14336, v5")
    n = 0
    for kk in range(14):
        for t in range(3):
            o = 16 + (n % 8) * 4; n += 1
            regs = []
            for tile in range(2):
                x = ((kk * 2 + tile) * 3 + t) * 4
                if x < 192:
                    for i in range(4): e("v_accvgpr_read_b32 v%d, a%d" % (48 + tile * 4 + i, x + i))
                    regs.append(48 + tile * 4)
                else: regs.append(112 + x - 192)
            e("v_cvt_pk_bf16_f32 v%d, v%d, v%d" % (o, regs[0], regs[0] + 1)); e("v_cvt_pk_bf16_f32 v%d, v%d, v%d" % (o + 1, regs[0] + 2, regs[0] + 3))
            e("v_cvt_pk_bf16_f32 v%d, v%d, v%d" % (o + 2, regs[1], regs[1] + 1)); e("v_cvt_pk_bf16_f32 v%d, v%d, v%d" % (o + 3, regs[1] + 2, regs[1] + 3))
            e("buffer_store_dwordx4 v[%d:%d], v%d, s[40:43], 0 offen offset:%d" % (o, o + 3, 4 + t, kk * 64))
    e("s_waitcnt vmcnt(0)")
    stamp(5)
    e("s_branch L1_end")

    e("L1_loader:")
    e("s_getpc_b64 s[70:71]")
    e("L1_pc:")
    e("s_sub_u32 s70, s70, L1_pc-attn_kernel"); e("s_subb_u32 s71, s71, 0")
    e("s_lshr_b32 s72, s2, 3"); e("s_cmp_ge_u32 s72, 21"); e("s_cbranch_scc1 L1_nopf"); e("s_lshl_b32 s72, s72, 12")
    e("v_lshl_add_u32 v40, v0, 6, s72"); e("v_mov_b32 v41, s71")
    e("v_add_co_u32 v42, vcc, s70, v40"); e("s_nop 1"); e("v_addc_co_u32 v43, vcc, 0, v41, vcc")
    e("global_load_dword v44, v[42:43], off")
    e("L1_nopf:")
    e("s_lshr_b32 s48, s2, 4"); e("s_add_u32 s48, s48, s2")
    e("v_lshrrev_b32 v1, 5, v0"); e("v_and_b32 v2, 31, v0")
    for p in range(8):
        sw = 2 * (p & 1) + 4 * (p >> 1)
        e("v_add_u32 v3, %d, v1" % sw); e("v_xor_b32 v3, v3, v2"); e("v_lshlrev_b32 v3, 4, v3")
        e("v_lshl_add_u32 v%d, v1, 9, v3" % (8 + p))
    for p in range(2):
        e("v_add_u32 v3, %d, v1" % (2 * p)); e("v_lshlrev_b32 v3, 2, v3"); e("v_xor_b32 v3, v3, v2"); e("v_lshlrev_b32 v3, 4, v3")
        e("v_lshl_add_u32 v%d, v1, 9, v3" % (16 + p)); e("v_lshl_add_u32 v%d, v1, 13, v3" % (18 + p))
    for i in range(14):
        e("v_add_u32 v3, %d, v0" % (i * 64))
        e("v_lshrrev_b32 v4, 3, v3"); e("v_mul_u32_u24 v4, 9363, v4"); e("v_lshrrev_b32 v4, 16, v4")
        e("v_mul_u32_u24 v5, 56, v4"); e("v_sub_u32 v5, v3, v5")
        e("v_lshrrev_b32 v6, 1, v4"); e("v_and_b32 v6, 1, v6"); e("v_lshlrev_b32 v6, 2, v6"); e("v_xor_b32 v5, v5, v6")
        e("v_mul_u32_u24 v4, 896, v4"); e("v_lshl_add_u32 v%d, v5, 4, v4" % (20 + i))
    cnt = {}
    def issue(s):
        n = 14 if s >= 46 else 16
        cnt[s] = n
        if NOLOAD: return
        for i in range(n):
            e("s_mov_b32 m0, %d" % (POS[s] * 16384 + i * 1024))
            if s < 14:
                e("s_mov_b32 s47, %d" % ((s * 32 + 2 * i) * 8192))
                e("buffer_load_dwordx4 v%d, s[36:39], s47 offen lds" % (18 + (i & 1)))
            elif s < 46:
                if i == 0: e("s_add_u32 s49, s48, %d" % ((s - 14) & 15)); e("s_and_b32 s49, s49, 15"); e("s_lshl_b32 s49, s49, 14")
                e("s_add_u32 s47, s49, %d" % (i * 1024))
                if s < 30: e("buffer_load_dwordx4 v%d, s[28:31], s47 offen nt lds" % (8 + ((i & 1) | ((i >> 2) << 1))))
                else: e("buffer_load_dwordx4 v%d, s[32:35], s47 offen nt lds" % (16 + (i & 1)))
            else:
                e("s_mov_b32 s47, %d" % ((s - 46) * 14336))
                e("buffer_load_dwordx4 v%d, s[64:67], s47 offen lds" % (20 + i))
    order = []
    def do_issue(x):
        issue(x); order.append(x)
    for x in LORDER:
        if ISSUE_AT[x] == -1: do_issue(x)
    for st in range(NSLOT):
        if st in order:
            after = sum(cnt[y] for y in order[order.index(st) + 1:])
            assert after <= 48
            e("s_waitcnt vmcnt(%d)" % after)
        e("s_barrier")
        for x in LORDER:
            if ISSUE_AT[x] == st: do_issue(x)
    e("L1_end:")
    e("s_endpgm")

def kernel2():
    e(".globl reduce_kernel"); e(".p2align 8"); e(".type reduce_kernel,@function")
    e("reduce_kernel:")
    e("s_cmp_ge_u32 s2, 504"); e("s_cbranch_scc1 L2_end")
    e("s_load_dwordx2 s[14:15], s[0:1], 80"); e("s_load_dwordx2 s[16:17], s[0:1], 96")
    e("s_lshl_b32 s3, s2, 8"); e("v_add_u32 v1, s3, v0")
    e("v_lshrrev_b32 v2, 7, v1"); e("v_mul_u32_u24 v2, 1041, v2"); e("v_lshrrev_b32 v2, 16, v2")
    e("v_mul_u32_u24 v3, 8064, v2"); e("v_sub_u32 v3, v1, v3")
    e("s_mov_b32 s4, 2064384"); e("v_mul_lo_u32 v4, v2, s4"); e("v_lshl_add_u32 v4, v3, 4, v4")
    e("s_waitcnt lgkmcnt(0)")
    e("s_mov_b32 s20, s16"); e("s_mov_b32 s21, s17"); e("s_mov_b32 s22, 33030144"); e("s_mov_b32 s23, 0x20000")
    e("s_mov_b32 s24, s14"); e("s_mov_b32 s25, s15"); e("s_mov_b32 s26, 2064384"); e("s_mov_b32 s27, 0x20000")
    for h in range(16):
        e("s_mov_b32 s5, %d" % (h * 129024))
        e("buffer_load_dwordx4 v[%d:%d], v4, s[20:23], s5 offen" % (16 + h * 4, 19 + h * 4))
    e("v_lshrrev_b32 v5, 3, v3"); e("v_mul_u32_u24 v5, 9363, v5"); e("v_lshrrev_b32 v5, 16, v5"); e("v_mul_u32_u24 v6, 56, v5"); e("v_sub_u32 v6, v3, v6")
    e("v_and_b32 v7, 7, v2"); e("v_mul_u32_u24 v7, 144, v7"); e("v_add_u32 v7, v7, v5"); e("v_mul_u32_u24 v7, 1792, v7")
    e("v_lshrrev_b32 v8, 3, v2"); e("v_mul_u32_u24 v8, 896, v8"); e("v_add_u32 v7, v7, v8"); e("v_lshl_add_u32 v7, v6, 4, v7")
    for i in range(8): e("v_mov_b32 v%d, 0" % (8 + i))
    for h in range(16):
        e("s_waitcnt vmcnt(%d)" % (15 - h))
        for i in range(4):
            r = 16 + h * 4 + i
            e("v_lshlrev_b32 v80, 16, v%d" % r); e("v_and_b32 v81, 0xffff0000, v%d" % r)
            e("v_add_f32 v%d, v%d, v80" % (8 + 2 * i, 8 + 2 * i)); e("v_add_f32 v%d, v%d, v81" % (9 + 2 * i, 9 + 2 * i))
    for i in range(4): e("v_cvt_pk_bf16_f32 v%d, v%d, v%d" % (84 + i, 8 + 2 * i, 9 + 2 * i))
    e("buffer_store_dwordx4 v[84:87], v7, s[24:27], 0 offen")
    e("s_waitcnt vmcnt(0)")
    e("L2_end:")
    e("s_endpgm")

def desc(name, nv, ao):
    L.append(""".section .rodata,"a"
.p2align 6
.amdhsa_kernel %s
  .amdhsa_next_free_vgpr %d
  .amdhsa_next_free_sgpr 102
  .amdhsa_accum_offset %d
  .amdhsa_group_segment_fixed_size 0
  .amdhsa_kernarg_size 104
  .amdhsa_user_sgpr_count 2
  .amdhsa_user_sgpr_kernarg_segment_ptr 1
  .amdhsa_system_sgpr_workgroup_id_x 1
.end_amdhsa_kernel
.text""" % (name, nv, ao))

L.append(HDR.rstrip("\n"))
L.append("; @launch kernel=attn_kernel grid=(256,1,1) block=(256,1,1) lds=%d" % LDS1)
L.append("; @launch kernel=reduce_kernel grid=(504,1,1) block=(256,1,1) lds=0")
L.append('.amdgcn_target "amdgcn-amd-amdhsa--gfx950"')
L.append(".text")
kernel1(); desc("attn_kernel", 512, 256)
kernel2(); desc("reduce_kernel", 88, 88)
open(OUT or "cdna_kernels/%s.s" % NAME, "w").write("\n".join(L) + "\n")
```

```python
import sys, os
STAMP = os.environ.get("STAMP"); NOLOAD = os.environ.get("NOLOAD"); OUT = os.environ.get("OUT")
NAME = "concat_heads__mha_block_cached__gqa_block_cached__near_ridge"
L = []
def e(s=""): L.append("    " + s if s and not s.endswith(":") else s)
D = 10
NWQ = int(os.environ.get("NWQ", "5"))
NSLOT = 60
LDS1 = D * 16384
HDR = open("cdna_kernels/%s.s.ref" % NAME).read().split("; Override launch")[0]
FB = 192
NFB = 12
PF = int(os.environ.get("PF", "6"))

def stamp(i):
    if not STAMP: return
    e("s_memtime s[60:61]"); e("s_waitcnt lgkmcnt(0)"); e("v_mov_b32 v14, s60"); e("v_mov_b32 v15, %d" % (i*4))
    e("s_lshl_b32 s62, s9, 6"); e("v_add_u32 v15, s62, v15")
    e("buffer_store_dword v14, v15, s[56:59], 0 offen")

NPRE = 6
LORDER = list(range(14)) + list(range(14 + NPRE, NSLOT))
POS = {14 + i: D - NPRE + i for i in range(NPRE)}
ISSUE_AT = {}
def _cnt(x): return 16
_free = list(range(D - NPRE)); _q = list(LORDER); _iss = []
def _try(st):
    while _q and _free:
        pend = [y for y in _iss if y > st]
        aft = sum(_cnt(y) for y in pend[1:]) if pend else -16
        if aft + _cnt(_q[0]) > 48: break
        x = _q.pop(0); POS[x] = _free.pop(0); ISSUE_AT[x] = st; _iss.append(x)
_try(-1)
for st in range(NSLOT):
    assert st in POS, st
    if st >= 2: _free.append(POS[st - 2])
    _try(st)
def kernel1():
    e(".globl attn_kernel"); e(".p2align 8"); e(".type attn_kernel,@function")
    e("attn_kernel:")
    e("s_cmp_ge_u32 s2, 256"); e("s_cbranch_scc1 L1_end")
    e("s_and_b32 s3, s2, 7"); e("s_lshr_b32 s4, s2, 3")
    e("s_lshr_b32 s5, s3, 2")
    e("s_and_b32 s6, s3, 3"); e("s_lshl_b32 s6, s6, 2"); e("s_and_b32 s7, s4, 3"); e("s_add_u32 s6, s6, s7")
    e("s_lshr_b32 s7, s4, 2")
    e("s_mul_i32 s8, s5, 40")
    e("s_add_u32 s10, s0, s8"); e("s_addc_u32 s11, s1, 0")
    e("s_load_dwordx8 s[12:19], s[10:11], 0")
    e("s_load_dwordx2 s[52:53], s[10:11], 32")
    e("s_load_dwordx2 s[20:21], s[0:1], 96")
    if STAMP:
        e("s_load_dwordx2 s[56:57], s[0:1], 88"); e("s_mov_b32 s59, 0x20000"); e("s_cmp_eq_u32 s2, 0"); e("s_cselect_b32 s58, 256, 0")
    e("v_lshrrev_b32 v1, 6, v0"); e("s_nop 0"); e("v_readfirstlane_b32 s9, v1")
    e("v_and_b32 v0, 63, v0")
    e("s_waitcnt lgkmcnt(0)")
    e("s_mul_i32 s22, s7, 129024")
    e("s_add_u32 s24, s12, s22"); e("s_addc_u32 s25, s13, 0"); e("s_mov_b32 s26, 129024"); e("s_mov_b32 s27, 0x20000")
    e("s_lshl_b32 s23, s7, 4"); e("s_add_u32 s23, s23, s6"); e("s_lshl_b32 s22, s23, 18")
    e("s_add_u32 s28, s14, s22"); e("s_addc_u32 s29, s15, 0"); e("s_mov_b32 s30, 262144"); e("s_mov_b32 s31, 0x20000")
    e("s_add_u32 s32, s16, s22"); e("s_addc_u32 s33, s17, 0"); e("s_mov_b32 s34, 262144"); e("s_mov_b32 s35, 0x20000")
    e("s_lshl_b32 s22, s6, 9")
    e("s_add_u32 s36, s18, s22"); e("s_addc_u32 s37, s19, 0"); e("s_sub_u32 s38, 3670016, s22"); e("s_mov_b32 s39, 0x20000")
    e("s_lshl_b32 s22, s5, 7"); e("s_add_u32 s22, s22, s23"); e("s_mul_i32 s22, s22, 129024")
    e("s_add_u32 s40, s20, s22"); e("s_addc_u32 s41, s21, 0"); e("s_mov_b32 s42, 129024"); e("s_mov_b32 s43, 0x20000")
    e("s_mul_i32 s22, s6, 229376")
    e("s_add_u32 s64, s52, s22"); e("s_addc_u32 s65, s53, 0"); e("s_mov_b32 s66, 229376"); e("s_mov_b32 s67, 0x20000")
    e("s_cmp_eq_u32 s9, 3"); e("s_cbranch_scc1 L1_loader")

    e("v_and_b32 v1, 15, v0"); e("v_lshrrev_b32 v2, 4, v0"); e("v_lshrrev_b32 v3, 2, v1"); e("v_and_b32 v16, 3, v0")
    e("s_mul_i32 s44, s9, 48")
    e("v_add_u32 v17, s44, v1"); e("v_mul_u32_u24 v17, 896, v17"); e("v_lshl_add_u32 v18, v2, 4, v17")
    e("v_add_u32 v19, 14336, v18"); e("v_add_u32 v20, 14336, v19")
    def xload(k0, k1):
        for ks in range(k0, k1):
            for t in range(3):
                r = (t * 14 + ks) * 4
                e("buffer_load_dwordx4 a[%d:%d], v%d, s[24:27], 0 offen offset:%d" % (r, r + 3, 18 + t, ks * 64))
    xload(0, 7)
    e("s_lshr_b32 s48, s2, 4"); e("s_add_u32 s48, s48, s2")
    e("v_lshrrev_b32 v30, 5, v0"); e("v_and_b32 v31, 31, v0")
    for p in range(8):
        sw = 2 * (p & 1) + 4 * (p >> 1)
        e("v_add_u32 v32, %d, v30" % sw); e("v_xor_b32 v32, v32, v31"); e("v_lshlrev_b32 v32, 4, v32")
        e("v_lshl_add_u32 v%d, v30, 9, v32" % (40 + p))
    e("s_lshl_b32 s50, s9, 1")
    if not NOLOAD:
        for u in range(2):
            e("s_add_u32 s49, s48, s50"); e("s_add_u32 s49, s49, %d" % u); e("s_and_b32 s49, s49, 15"); e("s_lshl_b32 s49, s49, 14")
            e("s_add_u32 s51, s50, %d" % (D - NPRE + u)); e("s_lshl_b32 s51, s51, 14")
            for i in range(16):
                e("s_add_u32 s47, s51, %d" % (i * 1024)); e("s_mov_b32 m0, s47"); e("s_add_u32 s47, s49, %d" % (i * 1024))
                e("buffer_load_dwordx4 v%d, s[28:31], s47 offen nt lds" % (40 + ((i & 1) | ((i >> 2) << 1))))
    e("v_lshl_add_u32 v21, v2, 3, v3"); e("v_lshlrev_b32 v21, 9, v21"); e("v_lshl_add_u32 v21, v16, 4, v21")
    for i in range(4):
        e("v_xor_b32 v22, %d, v3" % i); e("v_lshl_add_u32 v%d, v22, 6, v21" % (4 + i))
    e("v_lshl_add_u32 v21, v3, 3, v16"); e("v_lshlrev_b32 v21, 9, v21")
    e("v_xor_b32 v22, v2, v16"); e("v_lshl_add_u32 v21, v22, 4, v21")
    for i in range(4):
        e("v_xor_b32 v22, %d, v3" % i); e("v_lshl_add_u32 v%d, v22, 6, v21" % (8 + i))
    e("v_lshl_add_u32 v21, v2, 3, v3"); e("v_lshlrev_b32 v21, 6, v21"); e("v_lshl_add_u32 v12, v16, 4, v21")
    for i in range(4): e("v_mov_b32 v21, 0x3f803f80"); e("v_accvgpr_write_b32 a%d, v21" % (240 + i))

    CUR = 60
    def kind(s): return "wq" if s < 14 else "k" if s < 30 else "v" if s < 46 else "wo"
    frags = []
    for s in range(NSLOT):
        k = kind(s)
        for f in range(16): frags.append((s, f))
    lds_q = []
    state = {"issued": 0}
    def issue_read(idx):
        s, f = frags[idx]; k = kind(s); fb = FB + (idx % NFB) * 4
        if f == 0:
            e("s_barrier")
            base = POS[s] * 16384
            src = {"wq": 4, "v": 4, "k": 8, "wo": 12}[k]
            for i in range(1 if k == "wo" else 4):
                e("v_add_u32 v%d, %d, v%d" % ((8 if k == "wo" else CUR) + i, base, src + i))
        if k == "k":
            tile, ks = f >> 3, f & 7
            e("ds_read_b128 a[%d:%d], v%d offset:%d" % (fb, fb + 3, CUR + (ks & 3), (ks >> 2) * 256 + tile * 2048)); n = 1
        elif k == "wo":
            ks, tile = f >> 1, f & 1
            off = ks * 2048 + tile * 8
            e("ds_read_b64_tr_b16 a[%d:%d], v8 offset:%d" % (fb, fb + 1, off))
            e("ds_read_b64_tr_b16 a[%d:%d], v8 offset:%d" % (fb + 2, fb + 3, off + 256)); n = 2
        else:
            kk, tile = f >> 1, f & 1
            off = (kk >> 2) * 256 + tile * 8
            e("ds_read_b64_tr_b16 a[%d:%d], v%d offset:%d" % (fb, fb + 1, CUR + (kk & 3), off))
            e("ds_read_b64_tr_b16 a[%d:%d], v%d offset:%d" % (fb + 2, fb + 3, CUR + (kk & 3), off + 2048)); n = 2
        lds_q.append((idx, n)); state["issued"] = idx + 1
    def wait_frag(idx):
        while lds_q and lds_q[0][0] <= idx: lds_q.pop(0)
        e("s_waitcnt lgkmcnt(%d)" % sum(n for _, n in lds_q))
    def drain():
        lds_q.clear()
    def oacc(f, t):
        x = (f * 3 + t) * 4
        return "a[%d:%d]" % (x, x + 3) if x < 192 else "v[%d:%d]" % (112 + x - 192, 112 + x - 192 + 3)
    def mfmas(idx):
        s, f = frags[idx]; k = kind(s); fb = FB + (idx % NFB) * 4
        out = []
        for t in range(3):
            if k == "wq":
                a = 64 + (f * 3 + t) * 4; d = "v[%d:%d]" % (a, a + 3); b = (t * 14 + s) * 4; bs = "a[%d:%d]" % (b, b + 3); first = s == 0
            elif k == "k":
                j = s - 14; tile, ks = f >> 3, f & 7
                a = 16 + (tile * 3 + t) * 4; d = "v[%d:%d]" % (a, a + 3); q = (t * 8 + ks) * 4; bs = "a[%d:%d]" % (q, q + 3); first = ks == 0
            elif k == "v":
                j = s - 30; a = (f * 3 + t) * 4; d = "a[%d:%d]" % (a, a + 3); p = 64 + (j * 3 + t) * 4; bs = "v[%d:%d]" % (p, p + 3); first = j == 0
            else:
                ks, tile = f >> 1, f & 1; a = 128 + ((s & 1) * 6 + tile * 3 + t) * 4; d = "v[%d:%d]" % (a, a + 3)
                o = 16 + (t * 8 + ks) * 4; bs = "v[%d:%d]" % (o, o + 3); first = ks == 0
            out.append("v_mfma_f32_16x16x32_bf16 %s, a[%d:%d], %s, %s" % (d, fb, fb + 3, bs, "0" if first else d))
        if k == "v" and f == 8:
            for t in range(3):
                p = 64 + ((s - 30) * 3 + t) * 4; d = "a[%d:%d]" % (244 + t * 4, 247 + t * 4)
                out.append("v_mfma_f32_16x16x32_bf16 %s, a[240:243], v[%d:%d], %s" % (d, p, p + 3, "0" if s == 30 else d))
        return out
    def opost(nb):
        r = []
        for t in range(3):
            a = 128 + ((nb & 1) * 6 + t) * 4; o = 112 + (t & 1) * 4
            for i in range(4): r.append("v_mul_f32 v%d, v%d, v%d" % (a + i, a + i, 120 + t))
            for i in range(4): r.append("v_mul_f32 v%d, v%d, v%d" % (a + 12 + i, a + 12 + i, 120 + t))
            r += ["v_cvt_pk_bf16_f32 v%d, v%d, v%d" % (o, a, a + 1), "v_cvt_pk_bf16_f32 v%d, v%d, v%d" % (o + 1, a + 2, a + 3),
                  "v_cvt_pk_bf16_f32 v%d, v%d, v%d" % (o + 2, a + 12, a + 13), "v_cvt_pk_bf16_f32 v%d, v%d, v%d" % (o + 3, a + 14, a + 15),
                  "buffer_store_dwordx4 v[%d:%d], v%d, s[40:43], 0 offen offset:%d" % (o, o + 3, 4 + t, nb * 64)]
        return r
    def spost(hh):
        j, tile = hh >> 1, hh & 1
        r = []
        for t in range(3):
            d0 = 16 + (tile * 3 + t) * 4; p = 64 + (j * 3 + t) * 4 + 2 * tile; m = 52 + t
            r += ["v_max3_f32 v%d, v%d, v%d, v%d" % (m, m, d0, d0 + 1), "v_cvt_pk_bf16_f32 v%d, v%d, v%d" % (p, d0, d0 + 1),
                  "v_max3_f32 v%d, v%d, v%d, v%d" % (m, m, d0 + 2, d0 + 3), "v_cvt_pk_bf16_f32 v%d, v%d, v%d" % (p + 1, d0 + 2, d0 + 3)]
        return r
    def soft(j):
        r = []
        for t in range(3):
            p = 64 + (j * 3 + t) * 4; m = 52 + t; sm = 55 + t
            for i in range(0, 4, 2):
                for u in range(2):
                    x = 16 + 2 * u
                    r += ["v_lshlrev_b32 v%d, 16, v%d" % (x, p + i + u), "v_and_b32 v%d, 0xffff0000, v%d" % (x + 1, p + i + u)]
                for x in range(16, 20): r.append("v_fma_f32 v%d, v%d, s46, -v%d" % (x, x, m))
                for x in range(16, 20): r.append("v_exp_f32 v%d, v%d" % (x, x))
                r += ["s_nop 0", "v_cvt_pk_bf16_f32 v%d, v16, v17" % (p + i), "v_cvt_pk_bf16_f32 v%d, v18, v19" % (p + i + 1)]
        return r
    def run(idx0, idx1, fill=None, skip=2):
        fill = list(fill or [])
        nm = (idx1 - idx0 - skip) * 3
        per = -(-len(fill) // nm) if fill else 0
        for idx in range(idx0, idx1):
            while state["issued"] < min(len(frags), idx + PF): issue_read(state["issued"])
            wait_frag(idx)
            for m in mfmas(idx):
                e(m)
                if idx - idx0 >= skip:
                    for _ in range(per):
                        if fill: e(fill.pop(0))
        for x in fill: e(x)
    def first_idx(s): return next(i for i, (a, b) in enumerate(frags) if a == s)
    e("v_xor_b32 v58, 16, v0"); e("v_lshlrev_b32 v58, 2, v58"); e("v_xor_b32 v59, 32, v0"); e("v_lshlrev_b32 v59, 2, v59")
    def xreduce(base, op):
        for adr in (58, 59):
            for t in range(3): e("ds_bpermute_b32 v%d, v%d, v%d" % (20 + t, adr, base + t))
            e("s_waitcnt lgkmcnt(0)"); drain()
            for t in range(3): e("%s v%d, v%d, v%d" % (op, base + t, base + t, 20 + t))
    stamp(0)
    for sq in range(14):
        KK = 0 if NOLOAD else 32
        if sq < 4: e("s_waitcnt vmcnt(%d)" % (21 - 3 * (sq + 1) + KK))
        elif sq < 7: e("s_waitcnt vmcnt(%d)" % (21 - 3 * (sq + 1) + KK + 21))
        else: e("s_waitcnt vmcnt(%d)" % (42 - 3 * (sq + 1)))
        if sq == 3: xload(7, 14)
        run(first_idx(sq), first_idx(sq + 1))
    e("s_nop 7"); e("s_nop 1")
    for kk in range(8):
        for t in range(3):
            a0 = 64 + ((kk * 2) * 3 + t) * 4; a1 = a0 + 12
            e("v_cvt_pk_bf16_f32 v16, v%d, v%d" % (a0, a0 + 1)); e("v_cvt_pk_bf16_f32 v17, v%d, v%d" % (a0 + 2, a0 + 3))
            e("v_cvt_pk_bf16_f32 v18, v%d, v%d" % (a1, a1 + 1)); e("v_cvt_pk_bf16_f32 v19, v%d, v%d" % (a1 + 2, a1 + 3))
            q = (t * 8 + kk) * 4
            for i in range(4): e("v_accvgpr_write_b32 a%d, v%d" % (q + i, 16 + i))
    for t in range(3): e("v_mov_b32 v%d, 0xff800000" % (52 + t))
    stamp(1)
    for hh in range(32):
        run(first_idx(14) + hh * 8, first_idx(14) + hh * 8 + 8, spost(hh - 1) if hh else None, skip=3)
    e("s_nop 7"); e("s_nop 1")
    for x in spost(31): e(x)
    stamp(2)
    xreduce(52, "v_max_f32")
    e("s_mov_b32 s46, 0x3db8aa3b")
    for t in range(3): e("v_mul_f32 v%d, s46, v%d" % (52 + t, 52 + t))
    for t in range(3): e("v_mov_b32 v%d, 0" % (55 + t))
    for x in soft(0): e(x)
    e("s_nop 1")
    for j in range(16):
        run(first_idx(30 + j), first_idx(31 + j) if j < 15 else first_idx(46), soft(j + 1) if j < 15 else None, skip=0)
    stamp(3)
    e("s_nop 7"); e("s_nop 1")
    for t in range(3): e("v_accvgpr_read_b32 v%d, a%d" % (120 + t, 244 + t * 4))
    for t in range(3): e("v_rcp_f32 v%d, v%d" % (120 + t, 120 + t))
    for kk in range(8):
        for t in range(3):
            a0 = ((kk * 2) * 3 + t) * 4; a1 = a0 + 12
            for i in range(4): e("v_accvgpr_read_b32 v%d, a%d" % (112 + i, a0 + i))
            for i in range(4): e("v_accvgpr_read_b32 v%d, a%d" % (116 + i, a1 + i))
            o = 16 + (t * 8 + kk) * 4
            for i in range(4): e("v_cvt_pk_bf16_f32 v%d, v%d, v%d" % (o + i, 112 + 2 * i, 113 + 2 * i))
    e("v_add_u32 v4, s44, v1"); e("v_mul_u32_u24 v4, 896, v4"); e("v_lshl_add_u32 v4, v2, 4, v4")
    e("v_add_u32 v5, 14336, v4"); e("v_add_u32 v6, 14336, v5")
    for nb in range(14):
        run(first_idx(46 + nb), first_idx(47 + nb) if nb < 13 else len(frags), opost(nb - 1) if nb else None, skip=3)
    stamp(4)
    e("s_nop 7"); e("s_nop 1")
    for x in opost(13): e(x)
    e("s_waitcnt vmcnt(0)")
    stamp(5)
    e("s_branch L1_end")

    e("L1_loader:")
    e("s_getpc_b64 s[70:71]")
    e("L1_pc:")
    e("s_sub_u32 s70, s70, L1_pc-attn_kernel"); e("s_subb_u32 s71, s71, 0")
    e("s_lshr_b32 s72, s2, 3"); e("s_cmp_ge_u32 s72, 21"); e("s_cbranch_scc1 L1_nopf"); e("s_lshl_b32 s72, s72, 12")
    e("v_lshl_add_u32 v40, v0, 6, s72"); e("v_mov_b32 v41, s71")
    e("v_add_co_u32 v42, vcc, s70, v40"); e("s_nop 1"); e("v_addc_co_u32 v43, vcc, 0, v41, vcc")
    e("global_load_dword v44, v[42:43], off")
    e("L1_nopf:")
    e("s_lshr_b32 s48, s2, 4"); e("s_add_u32 s48, s48, s2")
    e("v_lshrrev_b32 v1, 5, v0"); e("v_and_b32 v2, 31, v0")
    for p in range(8):
        sw = 2 * (p & 1) + 4 * (p >> 1)
        e("v_add_u32 v3, %d, v1" % sw); e("v_xor_b32 v3, v3, v2"); e("v_lshlrev_b32 v3, 4, v3")
        e("v_lshl_add_u32 v%d, v1, 9, v3" % (8 + p))
    for p in range(2):
        e("v_add_u32 v3, %d, v1" % (2 * p)); e("v_lshlrev_b32 v3, 2, v3"); e("v_xor_b32 v3, v3, v2"); e("v_lshlrev_b32 v3, 4, v3")
        e("v_lshl_add_u32 v%d, v1, 9, v3" % (16 + p)); e("v_lshl_add_u32 v%d, v1, 13, v3" % (18 + p))
    e("v_lshrrev_b32 v3, 2, v0"); e("v_mul_u32_u24 v3, 896, v3"); e("v_and_b32 v4, 3, v0"); e("v_lshl_add_u32 v20, v4, 4, v3")
    cnt = {}
    def issue(s):
        n = 16
        cnt[s] = n
        if NOLOAD: return
        for i in range(n):
            e("s_mov_b32 m0, %d" % (POS[s] * 16384 + i * 1024))
            if s < 14:
                e("s_mov_b32 s47, %d" % ((s * 32 + 2 * i) * 8192))
                e("buffer_load_dwordx4 v%d, s[36:39], s47 offen lds" % (18 + (i & 1)))
            elif s < 46:
                if i == 0: e("s_add_u32 s49, s48, %d" % ((s - 14) & 15)); e("s_and_b32 s49, s49, 15"); e("s_lshl_b32 s49, s49, 14")
                e("s_add_u32 s47, s49, %d" % (i * 1024))
                if s < 30: e("buffer_load_dwordx4 v%d, s[28:31], s47 offen nt lds" % (8 + ((i & 1) | ((i >> 2) << 1))))
                else: e("buffer_load_dwordx4 v%d, s[32:35], s47 offen nt lds" % (16 + (i & 1)))
            else:
                e("s_mov_b32 s47, %d" % (i * 16 * 896 + (s - 46) * 64))
                e("buffer_load_dwordx4 v20, s[64:67], s47 offen lds")
    order = []
    def do_issue(x):
        issue(x); order.append(x)
    for x in LORDER:
        if ISSUE_AT[x] == -1: do_issue(x)
    for st in range(NSLOT):
        if st in order:
            after = sum(cnt[y] for y in order[order.index(st) + 1:])
            assert after <= 48
            e("s_waitcnt vmcnt(%d)" % after)
        e("s_barrier")
        for x in LORDER:
            if ISSUE_AT[x] == st: do_issue(x)
    e("L1_end:")
    e("s_endpgm")

def kernel2():
    e(".globl reduce_kernel"); e(".p2align 8"); e(".type reduce_kernel,@function")
    e("reduce_kernel:")
    e("s_cmp_ge_u32 s2, 504"); e("s_cbranch_scc1 L2_end")
    e("s_load_dwordx2 s[14:15], s[0:1], 80"); e("s_load_dwordx2 s[16:17], s[0:1], 96")
    e("s_lshl_b32 s3, s2, 8"); e("v_add_u32 v1, s3, v0")
    e("v_lshrrev_b32 v2, 7, v1"); e("v_mul_u32_u24 v2, 1041, v2"); e("v_lshrrev_b32 v2, 16, v2")
    e("v_mul_u32_u24 v3, 8064, v2"); e("v_sub_u32 v3, v1, v3")
    e("s_mov_b32 s4, 2064384"); e("v_mul_lo_u32 v4, v2, s4"); e("v_lshl_add_u32 v4, v3, 4, v4")
    e("s_waitcnt lgkmcnt(0)")
    e("s_mov_b32 s20, s16"); e("s_mov_b32 s21, s17"); e("s_mov_b32 s22, 33030144"); e("s_mov_b32 s23, 0x20000")
    e("s_mov_b32 s24, s14"); e("s_mov_b32 s25, s15"); e("s_mov_b32 s26, 2064384"); e("s_mov_b32 s27, 0x20000")
    for h in range(16):
        e("s_mov_b32 s5, %d" % (h * 129024))
        e("buffer_load_dwordx4 v[%d:%d], v4, s[20:23], s5 offen" % (16 + h * 4, 19 + h * 4))
    e("v_lshrrev_b32 v5, 3, v3"); e("v_mul_u32_u24 v5, 9363, v5"); e("v_lshrrev_b32 v5, 16, v5"); e("v_mul_u32_u24 v6, 56, v5"); e("v_sub_u32 v6, v3, v6")
    e("v_and_b32 v7, 7, v2"); e("v_mul_u32_u24 v7, 144, v7"); e("v_add_u32 v7, v7, v5"); e("v_mul_u32_u24 v7, 1792, v7")
    e("v_lshrrev_b32 v8, 3, v2"); e("v_mul_u32_u24 v8, 896, v8"); e("v_add_u32 v7, v7, v8"); e("v_lshl_add_u32 v7, v6, 4, v7")
    for i in range(8): e("v_mov_b32 v%d, 0" % (8 + i))
    for h in range(16):
        e("s_waitcnt vmcnt(%d)" % (15 - h))
        for i in range(4):
            r = 16 + h * 4 + i
            e("v_lshlrev_b32 v80, 16, v%d" % r); e("v_and_b32 v81, 0xffff0000, v%d" % r)
            e("v_add_f32 v%d, v%d, v80" % (8 + 2 * i, 8 + 2 * i)); e("v_add_f32 v%d, v%d, v81" % (9 + 2 * i, 9 + 2 * i))
    for i in range(4): e("v_cvt_pk_bf16_f32 v%d, v%d, v%d" % (84 + i, 8 + 2 * i, 9 + 2 * i))
    e("buffer_store_dwordx4 v[84:87], v7, s[24:27], 0 offen")
    e("s_waitcnt vmcnt(0)")
    e("L2_end:")
    e("s_endpgm")

def desc(name, nv, ao):
    L.append(""".section .rodata,"a"
.p2align 6
.amdhsa_kernel %s
  .amdhsa_next_free_vgpr %d
  .amdhsa_next_free_sgpr 102
  .amdhsa_accum_offset %d
  .amdhsa_group_segment_fixed_size 0
  .amdhsa_kernarg_size 104
  .amdhsa_user_sgpr_count 2
  .amdhsa_user_sgpr_kernarg_segment_ptr 1
  .amdhsa_system_sgpr_workgroup_id_x 1
.end_amdhsa_kernel
.text""" % (name, nv, ao))

L.append(HDR.rstrip("\n"))
L.append("; @launch kernel=attn_kernel grid=(256,1,1) block=(256,1,1) lds=%d" % LDS1)
L.append("; @launch kernel=reduce_kernel grid=(504,1,1) block=(256,1,1) lds=0")
L.append('.amdgcn_target "amdgcn-amd-amdhsa--gfx950"')
L.append(".text")
kernel1(); desc("attn_kernel", 512, 256)
kernel2(); desc("reduce_kernel", 88, 88)
open(OUT or "cdna_kernels/%s.s" % NAME, "w").write("\n".join(L) + "\n")
```
